```python
import torch

def _softmax(x, axis=-1):
    return torch.softmax(x, dim=axis)
def _gelu(x):
    return torch.nn.functional.gelu(x, approximate="tanh")
def _silu(x):
    return torch.nn.functional.silu(x)
def _sigmoid(x):
    return torch.sigmoid(x)
def _layernorm(x, axis=-1, eps=1e-5):
    m = x.mean(dim=axis, keepdim=True)
    v = x.var(dim=axis, keepdim=True, unbiased=False)
    return (x - m) / torch.sqrt(v + eps)
def _scatter_add(tgt, idx, src, axis=0):
    return tgt.clone().index_add_(axis, idx, src)
def _segment_sum(src, seg, n):
    out = torch.zeros((n,) + src.shape[1:], dtype=src.dtype)
    return out.index_add_(0, seg, src)
def _pad(x, pw):
    flat = tuple(v for pair in reversed(pw) for v in pair)
    return torch.nn.functional.pad(x, flat)

kernel_name = 'parallel_sum__linear_kernel_hedgehog__moe_arch_mod__prompt'

def setup_inputs():

    _w = (lambda a: (lambda t: t.to(torch.bfloat16) if t.is_floating_point() else t)(torch.as_tensor(a)))
    def _A_setup():
        B, S, D, H = 1, 2048, 640, 32
        Dh = D // H
        return {
            "x": _w((lambda *s: torch.randn(*s, dtype=torch.bfloat16) * 0.05)(B, S, D)),
            "wqkv": _w((lambda *s: torch.randn(*s, dtype=torch.bfloat16) * 0.4)(D, 3 * D)),
            "w_phi": _w((lambda *s: torch.randn(*s, dtype=torch.bfloat16) * 0.4)(H, Dh, Dh) * (Dh ** -0.5)),
            "wo": _w((lambda *s: torch.randn(*s, dtype=torch.bfloat16) * 0.1)(D, D)),
        }
    _A_in = _A_setup()

    def _B_setup():
        B, S, D, F, C = 1, 2048, 640, 1536, 2
        return {
            "x": _w((lambda *s: torch.randn(*s, dtype=torch.bfloat16) * 0.05)(B, S, D)),
            "w_r": _w((lambda *s: torch.randn(*s, dtype=torch.bfloat16) * 0.05)(D)),
            "w_gate": _w((lambda *s: torch.randn(*s, dtype=torch.bfloat16) * 0.05)(D, F)),
            "w_up": _w((lambda *s: torch.randn(*s, dtype=torch.bfloat16) * 0.05)(D, F)),
            "w_down": _w((lambda *s: torch.randn(*s, dtype=torch.bfloat16) * 0.05)(F, D)),
        }
    _B_in = _B_setup()

    return {
        "A_x": _A_in["x"],
        "A_wqkv": _A_in["wqkv"],
        "A_w_phi": _A_in["w_phi"],
        "A_wo": _A_in["wo"],
        "B_x": _B_in["x"],
        "B_w_r": _B_in["w_r"],
        "B_w_gate": _B_in["w_gate"],
        "B_w_up": _B_in["w_up"],
        "B_w_down": _B_in["w_down"],
    }

def reference(A_x, A_wqkv, A_w_phi, A_wo, B_x, B_w_r, B_w_gate, B_w_up, B_w_down):
    def _A_ref(x, wqkv, w_phi, wo):
        B, S, D = x.shape
        H = 32; Dh = D // H
        qkv = (lambda x, *d: x.permute(*d))((x @ wqkv).reshape(B, S, 3, H, Dh), 2, 0, 3, 1, 4)
        q, k, v = qkv[0], qkv[1], qkv[2]
        pq = torch.einsum("bhsd,hdf->bhsf", q, w_phi)
        pk = torch.einsum("bhsd,hdf->bhsf", k, w_phi)
        phi_q = torch.concatenate([_softmax(pq, axis=-1), _softmax(-pq, axis=-1)], axis=-1)
        phi_k = torch.concatenate([_softmax(pk, axis=-1), _softmax(-pk, axis=-1)], axis=-1)
        kv = torch.einsum("bhsf,bhsd->bhfd", phi_k, v)
        z  = torch.einsum("bhsf->bhf", phi_k)
        num = torch.einsum("bhqf,bhfd->bhqd", phi_q, kv)
        den = torch.einsum("bhqf,bhf->bhq", phi_q, z)[..., None] + 1e-6
        o = num / den
        return (lambda x, *d: x.permute(*d))(o, 0, 2, 1, 3).reshape(B, S, D) @ wo

    def _B_ref(x, w_r, w_gate, w_up, w_down):
        B, S, D = x.shape
        C = 2
        r = x @ w_r
        idx = torch.argsort(-r, axis=-1)[:, :C]
        idx_e = (lambda x, n, axis: torch.repeat_interleave(x, n, dim=axis))(idx.reshape(B, C, 1), D, axis=2)
        x_sel = (lambda x, i, axis: torch.take_along_dim(x, i, dim=axis))(x, idx_e, axis=1)
        g = _silu(x_sel @ w_gate)
        u = x_sel @ w_up
        y = (g * u) @ w_down
        r_sel = _sigmoid((lambda x, i, axis: torch.take_along_dim(x, i, dim=axis))(r, idx, axis=1))
        y = y * r_sel.reshape(B, C, 1)
        b_off = (torch.arange(B) * S).reshape(B, 1)
        flat_idx = (idx + b_off).reshape(B * C)
        zero = (x * 0.0).reshape(B * S, D)
        upd = _scatter_add(zero, flat_idx, y.reshape(B * C, D), axis=0)
        return x + upd.reshape(B, S, D)

    x = A_x
    xn = _layernorm(x, axis=-1)
    return x + _A_ref(xn, A_wqkv, A_w_phi, A_wo) + _B_ref(xn, B_w_r, B_w_gate, B_w_up, B_w_down)
```

```python
import re

class Pool:
    def __init__(self, prefix, n, start=0):
        self.p = prefix; self.used = [False]*n
        for i in range(start): self.used[i] = True
        self.hi = start
    def alloc(self, n=1, align=None):
        if align is None: align = 1 if n == 1 else (2 if n < 4 else 4)
        i = 0
        while i + n <= len(self.used):
            if i % align == 0 and not any(self.used[i:i+n]):
                for k in range(i, i+n): self.used[k] = True
                self.hi = max(self.hi, i+n)
                return Reg(self.p, i, n, self)
            i += 1
        raise RuntimeError(f'out of {self.p} registers (need {n})')
    def at(self, i, n=1):
        assert not any(self.used[i:i+n]), f'{self.p}{i} busy'
        for k in range(i, i+n): self.used[k] = True
        self.hi = max(self.hi, i+n)
        return Reg(self.p, i, n, self)

class Reg:
    def __init__(self, p, i, n, pool=None):
        self.p = p; self.i = i; self.n = n; self.pool = pool
    def __str__(self):
        return f'{self.p}{self.i}' if self.n == 1 else f'{self.p}[{self.i}:{self.i+self.n-1}]'
    __repr__ = __str__
    def __format__(self, spec): return str(self)
    def __getitem__(self, k):
        if isinstance(k, slice):
            a = k.start or 0; b = self.n if k.stop is None else k.stop
            assert 0 <= a < b <= self.n, (a, b, self.n)
            return Reg(self.p, self.i+a, b-a)
        assert 0 <= k < self.n, (k, self.n)
        return Reg(self.p, self.i+k, 1)
    def sub(self, a, n): return self[a:a+n]
    def free(self):
        for k in range(self.i, self.i+self.n):
            assert self.pool.used[k]
            self.pool.used[k] = False

def free(*rs):
    for r in rs:
        if isinstance(r, (list, tuple)): free(*r)
        else: r.free()

REG_RE = re.compile(r'^(-|\|)?(abs\()?([vas])(\d+|\[(\d+):(\d+)\])\)?\|?$')
def parse_reg(op):
    op = op.strip()
    if op in ('vcc', 'exec'): return [(op, 0), (op, 1)]
    if op in ('vcc_lo', 'exec_lo'): return [(op[:-3], 0)]
    if op in ('vcc_hi', 'exec_hi'): return [(op[:-3], 1)]
    if op == 'm0': return [('m0', 0)]
    m = REG_RE.match(op)
    if not m: return []
    p = m.group(3)
    if m.group(5) is not None: return [(p, k) for k in range(int(m.group(5)), int(m.group(6))+1)]
    return [(p, int(m.group(4)))]

TRANS = ('v_exp_f32', 'v_log_f32', 'v_rcp_f32', 'v_rsq_f32', 'v_sqrt_f32', 'v_sin_f32', 'v_cos_f32', 'v_rcp_iflag_f32')
class Ins:
    def __init__(self, text):
        self.text = text
        t = text.split(';')[0].strip()
        self.label = None; self.mn = None; self.directive = False
        self.w = set(); self.r = set(); self.ws = 1
        if not t: self.ws = 0; return
        if t.endswith(':'): self.label = t[:-1]; self.ws = 0; return
        if t.startswith('.'): self.directive = True; self.ws = 0; return
        parts = t.split(None, 1)
        mn = parts[0]; self.mn = mn
        rest = parts[1] if len(parts) > 1 else ''
        ops = []; cur = ''; d = 0
        for ch in rest:
            if ch in '[(': d += 1
            if ch in '])': d -= 1
            if ch == ',' and d == 0: ops.append(cur.strip()); cur = ''
            else: cur += ch
        if cur.strip(): ops.append(cur.strip())
        mods = ''
        if ops:
            sp = ops[-1].split(None, 1)
            if len(sp) > 1: ops[-1] = sp[0]; mods = sp[1]
        self.ops = ops; self.mods = mods
        R = [parse_reg(o) for o in ops]
        self.mfma = mn.startswith('v_mfma')
        self.valu = mn.startswith('v_') and not self.mfma
        self.trans = any(mn.startswith(x) for x in TRANS)
        self.dl = mn.startswith('v_dot')
        self.dpp = '_dpp' in mn
        self.perml = mn.startswith('v_permlane')
        self.rdlane = mn.startswith('v_readlane') or mn.startswith('v_readfirstlane') or mn.startswith('v_writelane')
        self.vmem = mn.startswith('buffer_') or mn.startswith('global_')
        self.ds = mn.startswith('ds_')
        self.salu = mn.startswith('s_')
        self.branch = mn.startswith('s_cbranch') or mn == 's_branch'
        self.target = ops[0] if self.branch else None
        self.lds_dma = self.vmem and (' lds' in ' ' + mods or '_lds_' in mn)
        self.store = False; self.store_data = set()
        self.srcA = set(); self.srcC = set(); self.passes = 0
        allr = lambda L: set(x for l in L for x in l)
        if mn == 's_nop': self.ws = int(ops[0], 0) + 1; return
        if self.mfma:
            self.w = set(R[0]); self.srcA = allr(R[1:3]); self.srcC = set(R[3]); self.r = self.srcA | self.srcC
            self.passes = 8 if '32x32' in mn else 4
            self.dlist = R[0]; self.clist = R[3]
        elif self.perml:
            self.w = allr(R); self.r = allr(R)
        elif self.valu:
            nd = 1
            if re.match(r'v_(add|sub|subrev|addc|subb|subbrev)_co', mn) or mn.startswith('v_div_scale') or mn.startswith('v_mad_u64'): nd = 2
            self.w = allr(R[:nd]); self.r = allr(R[nd:])
            if mn.startswith('v_cmpx'): self.w |= {('exec', 0), ('exec', 1)}
            if any(mn.startswith(x) for x in ('v_fmac', 'v_dot2c', 'v_pk_fmac', 'v_writelane')) or self.dpp: self.r |= set(R[0])
        elif self.vmem:
            if mn in ('buffer_wbl2', 'buffer_inv'): pass
            elif self.lds_dma: self.r = allr(R) | {('m0', 0)}
            elif 'load' in mn: self.w = set(R[0]); self.r = allr(R[1:])
            else:
                self.store = True; self.r = allr(R)
                d = R[0] if mn.startswith('buffer_') else R[1]
                if len(d) >= 3: self.store_data = set(d)
                if 'atomic' in mn and 'sc0' in mods: self.w = set(R[0])
        elif self.ds:
            if 'read' in mn or 'permute' in mn or 'swizzle' in mn or '_rtn' in mn: self.w = set(R[0]); self.r = allr(R[1:])
            else: self.r = allr(R)
        elif self.salu:
            if mn.startswith('s_cmp') or mn.startswith('s_bitcmp') or self.branch or mn in ('s_waitcnt', 's_barrier', 's_endpgm', 's_sleep', 's_setprio'):
                self.r = allr(R)
            else:
                self.w = set(R[0]) if R else set(); self.r = allr(R[1:])
                if 'saveexec' in mn: self.w |= {('exec', 0), ('exec', 1)}

def isv(s): return set(x for x in s if x[0] in 'va' and len(x[0]) == 1)
def iss(s): return set(x for x in s if x[0] in ('s', 'vcc'))
EXEC = {('exec', 0), ('exec', 1)}

def need(p, c):
    n = 0
    if p.mn is None or p.mn == 's_nop' or c.mn == 's_nop': return 0
    if p.valu:
        pw = isv(p.w); ps = iss(p.w)
        if c.mfma and pw & c.r: n = max(n, 3 if p.dl else 2)
        if (c.dpp or c.perml) and pw & c.r: n = max(n, 2)
        if c.rdlane and pw & c.r: n = max(n, 1)
        if p.trans and c.valu and pw & (c.r | c.w): n = max(n, 1)
        if p.trans and (c.vmem or c.ds) and pw & c.r: n = max(n, 1)
        if p.dl and (c.valu or c.vmem or c.ds) and pw & (c.r | c.w):
            if not (c.mn == p.mn and not (pw & (set(parse_reg(c.ops[1])) | set(parse_reg(c.ops[2]))))): n = max(n, 3)
        if ps:
            if c.vmem and ps & c.r: n = max(n, 5)
            if c.rdlane and ps & c.r: n = max(n, 4)
            elif c.valu and (ps & c.r): n = max(n, 2)
            if c.salu and not c.branch and ps & c.r: n = max(n, 1)
        if p.w & EXEC:
            if c.mfma or c.rdlane or c.perml: n = max(n, 4)
            if c.dpp: n = max(n, 5)
    if p.mfma:
        big = 8 if p.passes == 4 else 12
        if c.mfma:
            if p.w & c.srcA: n = max(n, big)
            if p.w & c.srcC:
                if not (c.clist == p.dlist and c.passes == p.passes): n = max(n, big - 2)
            elif p.w & c.w: n = max(n, big - 2)
        elif (c.valu or c.vmem or c.ds) and p.w & (c.r | c.w): n = max(n, big)
        if c.valu and p.srcC & isv(c.w): n = max(n, 3 if p.passes == 4 else 7)
    if p.store_data and p.store_data & isv(c.w): n = max(n, 2)
    if p.salu and ('m0', 0) in p.w and c.lds_dma: n = max(n, 1)
    return n

def pad_hazards(lines, verbose=False):
    ins = [Ins(l) for l in lines]
    total = 0
    i = 0
    def preds(k, ins, br):
        out = []
        if k > 0 and not (ins[k-1].mn in ('s_branch', 's_endpgm')): out.append(k-1)
        if ins[k].label: out += br.get(ins[k].label, [])
        return out
    changed = True
    while changed:
        changed = False
        br = {}
        for k, x in enumerate(ins):
            if x.mn and x.branch: br.setdefault(x.target, []).append(k)
        for k, c in enumerate(ins):
            if c.mn is None or c.mn == 's_nop': continue
            worst = 0
            stack = [(q, 0) for q in preds(k, ins, br)]
            seen = {}
            while stack:
                q, d = stack.pop()
                if d >= 13 or seen.get(q, 99) <= d: continue
                seen[q] = d
                p = ins[q]
                if p.mn:
                    n = need(p, c)
                    if n - d > worst: worst = n - d; why = p.text
                for q2 in preds(q, ins, br): stack.append((q2, d + p.ws))
            if worst > 0:
                if verbose: print(f'pad {worst}: {why.strip()}  ->  {c.text.strip()}')
                ins.insert(k, Ins(f'    s_nop {worst-1}'))
                total += worst
                changed = True
                break
    return [x.text for x in ins], total

class Asm:
    def __init__(self):
        self.lines = []
        self.vm = 0
        self.V = Pool('v', 256, 1); self.A = Pool('a', 256); self.S = Pool('s', 100, 3)
        self.nlab = 0
    def __call__(self, text):
        last = None
        for l in text.split('\n'):
            t = l.strip()
            if not t: continue
            self.lines.append(t if t.endswith(':') else '    ' + t)
            if t.startswith('buffer_') or t.startswith('global_'):
                self.vm += 1; last = self.vm
        return last
    def waitvm(self, op, extra=''):
        n = self.vm - op
        assert 0 <= n, n
        if n > 63: n = 63
        self(f's_waitcnt vmcnt({n}) {extra}')
    def label(self, base):
        self.nlab += 1
        return f'L_{base}_{self.nlab}'
    def text(self, verbose=False):
        l, tot = pad_hazards(self.lines, verbose)
        self.padded = tot
        return '\n'.join(l) + '\n'
```

```python
import sys
from asmfw import *
KNAME = 'parallel_sum__linear_kernel_hedgehog__moe_arch_mod__prompt'

WS_FLAG = 0x10000; FLAG_STAGE = 0x8000
WS_CAND = 0x40000
WS_STAMP = 0x50000
WS_WKV = 0x100000; WS_WQ = 0x2A0000; WS_CS = 0x370000; WS_KVP = 0x390000
WS_O = 0x4A0000; WS_GP = 0x720000; WS_YP = 0x760000
WS_SIZE = 0x800000; DROP = 0x1000000
L_WKV = 0; L_WQ = 102400; L_CS = 153600; L_ST = 158720; L_KVS = 159744; L_ZERO = 163584; L_DUMMY = 163712
L_PHI = 0; L_OW = 16384; L_FFN = 32768; L_XR = L_WQ; L_TR = 0; L_WO = 0; L_EP = L_WQ
LOG2E = 0x3fb8aa3b
ONES2 = 0x3f803f80

def lanemask(f):
    m = 0
    for l in range(64):
        if f(l): m |= 1 << l
    return m

def gen(stamps=False):
    a = Asm(); V, A, S = a.V, a.A, a.S
    def smask(sp, m):
        a(f's_mov_b32 {sp[0]}, {m & 0xffffffff:#x}\ns_mov_b32 {sp[1]}, {m >> 32:#x}')
    def setexec(m):
        if m == (1 << 64) - 1: a('s_mov_b64 exec, -1')
        elif m <= 64: a(f's_mov_b64 exec, {m}')
        elif m < (1 << 31): a(f's_mov_b64 exec, {m:#x}')
        else: a(f's_mov_b32 exec_lo, {m & 0xffffffff:#x}\ns_mov_b32 exec_hi, {m >> 32:#x}')
    FULL = (1 << 64) - 1
    nst = [0]
    def stamp(name):
        if not stamps: return
        k = nst[0]; nst[0] += 1
        stamp_names.append(name)
        a(f's_memrealtime {sT64}\ns_waitcnt lgkmcnt(0)\nv_writelane_b32 {vstamp}, {sT64[0]}, {k}')
    stamp_names = []

    rX, rW, rPHI, rWO, rWR, rG, rU, rD, rOUT, rWS = [S.alloc(4) for _ in range(10)]
    kA = S.alloc(16); kB = S.alloc(8)
    tag = S.alloc(2); sM = S.alloc(2); sT64 = S.alloc(2)
    tb, hp, wv, rho, t0, t1, t2, t3 = [S.alloc() for _ in range(8)]
    fnb, fkb = S.alloc(), S.alloc()
    lane, l16, col, grp = [V.alloc() for _ in range(4)]
    vtag = V.alloc(2); vzero = V.alloc()
    if stamps: vstamp = V.alloc()

    a(f'''
    s_cmp_ge_u32 s2, 256
    s_cbranch_scc1 L_end
    s_load_dwordx16 {kA}, s[0:1], 0
    s_load_dwordx8 {kB}, s[0:1], 64''')
    if stamps: a(f'v_mov_b32 {vstamp}, 0')
    stamp('start')
    u_hp, u_s, u_seg, u_flag, u_ok = [S.alloc() for _ in range(5)]
    tv = V.alloc()
    a(f'''
    v_lshrrev_b32 {tv}, 6, v0
    v_and_b32 {lane}, 63, v0
    v_readfirstlane_b32 {wv}, {tv}
    v_lshlrev_b32 {l16}, 4, {lane}
    v_and_b32 {col}, 15, {lane}
    v_lshrrev_b32 {grp}, 4, {lane}
    v_mov_b32 {vzero}, 0
    s_and_b32 {t0}, s2, 7
    s_lshr_b32 {t1}, s2, 3
    s_lshr_b32 {tb}, {t0}, 1
    s_lshl_b32 {tb}, {tb}, 2
    s_lshr_b32 {t2}, {t1}, 3
    s_add_u32 {tb}, {tb}, {t2}
    s_and_b32 {hp}, {t0}, 1
    s_lshl_b32 {hp}, {hp}, 3
    s_and_b32 {t3}, {t1}, 7
    s_add_u32 {hp}, {hp}, {t3}
    s_mul_i32 {t2}, {t2}, 5
    s_lshr_b32 {t2}, {t2}, 1
    s_add_u32 {rho}, {t2}, {t3}
    s_sub_u32 {t2}, {rho}, 10
    s_cmp_ge_u32 {rho}, 10
    s_cselect_b32 {rho}, {t2}, {rho}
    s_min_u32 {t2}, s2, 239
    s_mul_i32 {fnb}, {t2}, 6554
    s_lshr_b32 {fnb}, {fnb}, 16
    s_mul_i32 {t3}, {fnb}, 10
    s_sub_u32 {fkb}, {t2}, {t3}
    s_cmp_lt_u32 {t1}, 30
    s_cselect_b32 {u_ok}, 0, {DROP}
    s_cmp_ge_u32 {t1}, 20
    s_cbranch_scc1 L_unit_q
    s_and_b32 {u_hp}, {t0}, 3
    s_lshl_b32 {u_hp}, {u_hp}, 2
    s_and_b32 {t2}, {t1}, 3
    s_add_u32 {u_hp}, {u_hp}, {t2}
    s_lshr_b32 {t2}, {t0}, 2
    s_mul_i32 {t2}, {t2}, 5
    s_lshr_b32 {t3}, {t1}, 2
    s_add_u32 {u_flag}, {t2}, {t3}
    s_lshl_b32 {u_s}, {u_flag}, 1
    s_lshr_b32 {t2}, {wv}, 1
    s_add_u32 {u_s}, {u_s}, {t2}
    s_and_b32 {u_seg}, {wv}, 1
    s_add_u32 {u_seg}, {u_seg}, 1
    s_branch L_unit_done
L_unit_q:
    s_min_u32 {t1}, {t1}, 29
    s_sub_u32 {t1}, {t1}, 20
    s_and_b32 {t2}, {t1}, 1
    s_lshl_b32 {u_hp}, {t0}, 1
    s_add_u32 {u_hp}, {u_hp}, {t2}
    s_lshr_b32 {t2}, {t1}, 1
    s_add_u32 {u_flag}, {t2}, 10
    s_lshl_b32 {u_s}, {t2}, 2
    s_add_u32 {u_s}, {u_s}, {wv}
    s_mov_b32 {u_seg}, 0
L_unit_done:
    s_lshl_b32 {t2}, {u_hp}, 4
    s_add_u32 {u_flag}, {u_flag}, {t2}''')
    for r, n in ((rX, 2621440), (rW, 2457600), (rPHI, 25600), (rWO, 819200), (rWR, 1280), (rG, 1966080), (rU, 1966080),
                 (rD, 1966080), (rOUT, 2621440), (rWS, WS_SIZE)):
        a(f's_mov_b32 {r[2]}, {n}\ns_mov_b32 {r[3]}, 0x20000')
    wa = V.alloc(); WA = [V.alloc(4) for _ in range(4)]
    so0, so1 = S.alloc(), S.alloc()
    a(f'''
    v_lshrrev_b32 {tv}, 2, {col}
    v_lshlrev_b32 {tv}, 3, {tv}
    v_and_b32 {wa}, 3, {lane}
    v_add_u32 {tv}, {tv}, {wa}
    v_mul_u32_u24 {tv}, 3840, {tv}
    v_lshl_add_u32 {wa}, {grp}, 4, {tv}
    s_mul_i32 {so0}, {u_s}, {32*3840}
    s_mul_i32 {t2}, {u_seg}, 1280
    s_add_u32 {so0}, {so0}, {t2}
    s_mul_i32 {t2}, {u_hp}, 80
    s_add_u32 {so0}, {so0}, {t2}
    s_add_u32 {so1}, {so0}, {4*3840}''')
    for k in range(4): a(f'v_mov_b32 {WA[1][k]}, 0\nv_mov_b32 {WA[3][k]}, 0')
    xo = [V.alloc() for _ in range(4)]
    tv2 = V.alloc()
    a(f'''
    v_lshrrev_b32 {tv}, 3, {lane}
    v_and_b32 {tv2}, 7, {lane}
    v_lshrrev_b32 {xo[0]}, 1, {tv}
    v_xor_b32 {tv2}, {tv2}, {xo[0]}
    v_mul_u32_u24 {tv}, 1280, {tv}
    v_lshl_add_u32 {xo[0]}, {tv2}, 4, {tv}
    v_xor_b32 {xo[1]}, 64, {xo[0]}
    v_add_u32 {xo[1]}, {8*1280 - 1024}, {xo[1]}
    v_add_u32 {xo[2]}, {16*1280 - 2048}, {xo[0]}
    v_add_u32 {xo[3]}, {16*1280 - 2048}, {xo[1]}''')
    xbase, xrot, xlds = S.alloc(), S.alloc(), S.alloc()
    a(f'''
    s_lshl_b32 {xbase}, {tb}, 2
    s_add_u32 {xbase}, {xbase}, {wv}
    s_mul_i32 {xbase}, {xbase}, {32*1280}
    s_mov_b32 {xrot}, {rho}
    s_mul_i32 {xlds}, {wv}, 12288
    s_add_u32 {xlds}, {xlds}, {L_XR}
    s_waitcnt lgkmcnt(0)''')
    for r, src in ((rW, kA[2:4]), (rPHI, kA[4:6]), (rWS, kB[6:8]), (rX, kA[0:2]), (rWR, kA[10:12]), (rWO, kA[6:8]), (rG, kA[12:14]),
                   (rU, kA[14:16]), (rD, kB[0:2]), (rOUT, kB[2:4])):
        a(f's_mov_b64 {r[0:2]}, {src}')
    stamp('kernarg')
    a(f's_load_dwordx2 {tag}, {rWS[0:2]}, 0')
    free(kA, kB)
    a(f'buffer_load_dwordx4 {WA[0]}, {wa}, {rW}, {so0} offen')
    a(f'buffer_load_dwordx4 {WA[2]}, {wa}, {rW}, {so1} offen')
    setexec(0xffff)
    a(f'buffer_load_dwordx4 {WA[1]}, {wa}, {rW}, {so0} offen offset:64')
    a(f'buffer_load_dwordx4 {WA[3]}, {wa}, {rW}, {so1} offen offset:64')
    setexec(FULL)
    a(f'''
    s_lshl_b32 {t0}, {wv}, 12
    s_mov_b32 m0, {t0}
    s_mul_i32 {t1}, {u_hp}, 1600
    buffer_load_dwordx4 {l16}, {rPHI}, {t1} offen lds''')
    op_p0 = a(f'buffer_load_dwordx4 {l16}, {rPHI}, {t1} offen offset:1024 lds')
    a(f'''
    s_lshl_b32 {t1}, {rho}, 7
    v_add_u32 {tv}, {t1}, {l16}
    v_subrev_u32 {tv2}, 1280, {tv}
    v_min_u32 {tv}, {tv}, {tv2}
    s_add_u32 {t0}, {t0}, {L_OW}
    s_mov_b32 m0, {t0}
    s_add_u32 {t1}, {t1}, 1024
    buffer_load_dwordx4 {tv}, {rWR}, 0 offen lds
    v_add_u32 {tv}, {t1}, {l16}
    v_subrev_u32 {tv2}, 1280, {tv}
    v_min_u32 {tv}, {tv}, {tv2}
    s_add_u32 {t0}, {t0}, 1024
    s_mov_b32 m0, {t0}''')
    op_wr = a(f'buffer_load_dwordx4 {tv}, {rWR}, 0 offen lds')
    xop = {}
    def xdma(jj):
        a(f'''
        s_lshl_b32 {t0}, {xrot}, 7
        s_add_u32 {t0}, {t0}, {xbase}
        s_add_u32 {t1}, {xlds}, {(jj % 3) * 4096}
        s_mov_b32 m0, {t1}
        s_add_u32 {xrot}, {xrot}, 1
        s_cmp_eq_u32 {xrot}, 10
        s_cselect_b32 {xrot}, 0, {xrot}''')
        for p in range(4):
            xop[jj] = a(f'buffer_load_dwordx4 {xo[p]}, {rX}, {t0} offen offset:{p*1024} lds')
    for jj in range(3): xdma(jj)
    Z = V.alloc(4); ON = V.alloc(4)
    for k in range(4): a(f'v_mov_b32 {Z[k]}, 0\nv_mov_b32 {ON[k]}, {ONES2:#x}')
    a(f'''
    s_lshl_b32 {t0}, {wv}, 12
    v_add_u32 {tv}, {t0}, {l16}
    ds_write_b128 {tv}, {Z} offset:{L_PHI + 2048}
    ds_write_b128 {tv}, {Z} offset:{L_PHI + 3072}
    ds_write_b128 {tv}, {ON} offset:{L_OW + 2048}
    ds_write_b128 {tv}, {ON} offset:{L_OW + 3072}
    v_subrev_u32 {tv2}, 20, {lane}
    v_min_u32 {tv2}, {tv2}, {lane}
    v_lshlrev_b32 {tv2}, 1, {tv2}
    v_mad_u32_u24 {tv2}, {lane}, 40, {tv2}
    v_add_u32 {tv2}, {t0}, {tv2}''')
    setexec((1 << 40) - 1)
    a(f'ds_write_b16 {tv2}, {ON[0]} offset:{L_PHI + 2048}')
    setexec(0xff)
    a(f'v_add_u32 {tv}, {L_ZERO}, {l16}\nds_write_b128 {tv}, {Z}')
    setexec(FULL)
    b0, b1, bz = V.alloc(), V.alloc(), V.alloc()
    a(f'''
    s_cmp_eq_u32 {u_seg}, 2
    s_cselect_b32 {t1}, 2048, 0
    s_add_u32 {t1}, {t1}, {t0}
    v_lshrrev_b32 {tv}, 2, {col}
    v_lshl_add_u32 {tv}, {grp}, 3, {tv}
    v_and_b32 {tv2}, 3, {lane}
    v_lshlrev_b32 {b0}, 3, {tv2}
    v_mad_u32_u24 {b0}, {tv}, 40, {b0}
    v_add_u32 {b0}, {t1}, {b0}
    v_min_u32 {tv2}, 1, {tv2}
    v_mul_u32_u24 {tv2}, 40, {tv2}
    v_sub_u32 {b1}, {b0}, {tv2}
    s_add_u32 {t0}, {t0}, {L_PHI + 2048 + 1600}
    v_mov_b32 {bz}, {t0}''')
    frs = [(0, 0), (0, 1), (1, 1), (0, 2), (1, 2)]
    badr = {}
    for (u, t) in frs:
        for j in range(2):
            r_ = V.alloc(); badr[(u, t, j)] = r_
            def ok(l):
                d = 32*u + 8*(l >> 4) + 4*j + ((l & 15) >> 2); n0 = 16*t + 4*(l & 3)
                return d < 40 and n0 < 40 and ((d >= 20) == (n0 >= 20))
            smask(sM, lanemask(ok))
            off = (32*u + 4*j) * 40 + (0, 32, 24)[t]
            a(f'v_add_u32 {r_}, {off}, {b1 if t == 1 else b0}\nv_cndmask_b32 {r_}, {bz}, {r_}, {sM}')
    free(b0, b1, bz)
    po = [V.alloc() for _ in range(3)]
    a(f'''
    v_lshrrev_b32 {tv}, 2, {col}
    v_and_b32 {tv2}, 3, {lane}
    v_lshlrev_b32 {tv2}, 4, {tv2}
    v_lshl_add_u32 {tv2}, {tv}, 8, {tv2}
    v_lshl_add_u32 {po[0]}, {grp}, 6, {tv2}
    v_xor_b32 {po[2]}, 128, {po[0]}
    v_min_u32 {tv}, 1, {tv}
    v_lshlrev_b32 {tv}, 7, {tv}
    v_xor_b32 {po[1]}, {tv}, {po[0]}
    s_mul_i32 {so0}, {u_hp}, 20
    s_add_u32 {so0}, {so0}, {u_s}
    s_lshl_b32 {so1}, {so0}, 8
    s_mul_i32 {t0}, {so0}, 2560
    s_add_u32 {t0}, {t0}, {WS_WQ}
    s_mul_i32 {so0}, {so0}, 5120
    s_mul_i32 {t1}, {u_seg}, 2560
    s_add_u32 {so0}, {so0}, {t1}
    s_add_u32 {so0}, {so0}, {WS_WKV - 2560}
    s_mul_i32 {t1}, {u_seg}, 80
    s_sub_u32 {t1}, {t1}, 80
    s_cmp_eq_u32 {u_seg}, 0
    s_cselect_b32 {so0}, {t0}, {so0}
    s_cselect_b32 {t1}, 160, {t1}
    s_add_u32 {so1}, {so1}, {t1}
    s_add_u32 {so1}, {so1}, {WS_CS}
    s_add_u32 {so0}, {so0}, {u_ok}
    s_add_u32 {so1}, {so1}, {u_ok}''')
    a.waitvm(op_p0, 'lgkmcnt(0)')
    stamp('p0_loaded')
    a(f'''
    s_add_u32 {tag[0]}, {tag[0]}, 0x7f4a7c15
    s_addc_u32 {tag[1]}, {tag[1]}, 0x9e3779b9
    v_mov_b32 {vtag[0]}, {tag[0]}
    v_mov_b32 {vtag[1]}, {tag[1]}''')
    BF = {fr: V.alloc(4) for fr in frs}
    for (u, t) in frs:
        for j in range(2):
            a(f'ds_read_b64_tr_b16 {BF[(u,t)][2*j:2*j+2]}, {badr[(u,t,j)]}')
    PD = [[V.alloc(4) for t in range(3)] for ra in range(2)]
    a('s_waitcnt lgkmcnt(0)')
    for (u, t) in frs:
        for ra in range(2):
            a(f'v_mfma_f32_16x16x32_bf16 {PD[ra][t]}, {WA[ra*2+u]}, {BF[(u,t)]}, {PD[ra][t] if u else 0}')
    PF = [V.alloc(4) for t in range(3)]
    for t in range(3):
        for ra in range(2):
            a(f'v_cvt_pk_bf16_f32 {PF[t][2*ra]}, {PD[ra][t][0]}, {PD[ra][t][1]}')
            a(f'v_cvt_pk_bf16_f32 {PF[t][2*ra+1]}, {PD[ra][t][2]}, {PD[ra][t][3]}')
        if t == 2: setexec(lanemask(lambda l: (l & 15) < 8))
        a(f'buffer_store_dwordx4 {PF[t]}, {po[t]}, {rWS}, {so0} offen offset:{t*1024} sc1')
    setexec(FULL)
    for t in range(3):
        a(f'v_mfma_f32_16x16x32_bf16 {PD[0][t]}, {ON}, {PF[t]}, 0')
    smask(sM, lanemask(lambda l: (l >> 4) == 1))
    a(f'v_cndmask_b32 {tv}, {PD[0][0][0]}, {PD[0][1][0]}, {sM}')
    smask(sM, lanemask(lambda l: (l >> 4) == 2))
    a(f'''
    v_cndmask_b32 {tv}, {tv}, {PD[0][2][0]}, {sM}
    v_cvt_pk_bf16_f32 {tv}, {tv}, {tv}
    v_lshlrev_b32 {tv2}, 1, {lane}''')
    setexec((1 << 40) - 1)
    op_p0st = a(f'buffer_store_short {tv}, {tv2}, {rWS}, {so1} offen sc1')
    setexec(FULL)
    free(list(BF.values()), PD, PF, WA, wa, po, list(badr.values()), Z, u_hp, u_s, u_seg)
    stamp('p0_stored')

    def publish(stage, idx, op, drop=None):
        a.waitvm(op)
        a(f'''
        s_barrier
        s_lshl_b32 {t0}, {idx}, 7
        s_add_u32 {t0}, {t0}, {WS_FLAG + stage*FLAG_STAGE}
        s_cmp_eq_u32 {wv}, 0
        s_cselect_b32 {t0}, {t0}, {DROP}''')
        if drop is not None: a(f's_add_u32 {t0}, {t0}, {drop}')
        setexec(1)
        a(f'buffer_store_dwordx2 {vtag}, {vzero}, {rWS}, {t0} offen sc1')
        setexec(FULL)
    def poll(voff, soff, mask):
        pv = V.alloc(2); L = a.label('poll'); E = a.label('polled')
        setexec(mask)
        a(f's_mov_b32 {t3}, 0\n{L}:')
        a.lines.append(f'    buffer_load_dwordx2 {pv}, {voff}, {rWS}, {soff} offen sc1')
        a(f'''
        s_add_u32 {t3}, {t3}, 1
        s_cmp_gt_u32 {t3}, 0x8000
        s_cbranch_scc1 {E}
        s_waitcnt vmcnt(0)
        v_cmp_ne_u64 vcc, {tag}, {pv}
        s_cbranch_vccnz {L}
        {E}:
        s_waitcnt vmcnt(0)''')
        setexec(FULL)
        free(pv)
    def wait_flags(stage, base, shift, n, poller=1):
        E = a.label('nopoll'); pa = V.alloc()
        a(f'''
        v_lshlrev_b32 {pa}, {7 + shift}, {lane}
        s_lshl_b32 {t0}, {base}, 7
        s_add_u32 {t0}, {t0}, {WS_FLAG + stage*FLAG_STAGE}
        s_cmp_eq_u32 {wv}, {poller}
        s_cbranch_scc0 {E}''')
        poll(pa, t0, (1 << n) - 1)
        a(f'{E}:\ns_waitcnt lgkmcnt(0)\ns_barrier')
        free(pa)

    X = [[A.alloc(4) for f in range(2)] for s in range(20)]
    OW = [V.alloc(4) for s in range(20)]
    owa = V.alloc(); xr = [V.alloc(), V.alloc()]
    a(f'''
    s_lshl_b32 {t0}, {wv}, 12
    s_add_u32 {t0}, {t0}, {L_OW}
    v_and_b32 {tv}, 1, {lane}
    v_xor_b32 {tv}, 1, {tv}
    v_lshlrev_b32 {tv}, 11, {tv}
    v_lshl_add_u32 {tv}, {grp}, 4, {tv}
    v_add_u32 {owa}, {t0}, {tv}
    v_lshrrev_b32 {tv}, 1, {col}
    v_xor_b32 {tv}, {tv}, {grp}
    v_lshlrev_b32 {tv}, 4, {tv}
    v_lshl_add_u32 {tv}, {col}, 7, {tv}
    v_add_u32 {xr[0]}, {xlds}, {tv}
    v_xor_b32 {tv}, 64, {tv}
    v_add_u32 {xr[1]}, {xlds}, {tv}''')
    a.waitvm(op_wr)
    for s in range(20):
        a(f'ds_read_b128 {OW[s]}, {owa} offset:{s*64}')
        if s == 9: a('s_waitcnt lgkmcnt(0)')
    a('s_waitcnt lgkmcnt(0)')
    SWacc = V.alloc(4); G = [V.alloc(4), V.alloc(4)]; SS = [V.alloc(4), V.alloc(4)]
    for s in range(20):
        a(f'v_mfma_f32_16x16x32_bf16 {SWacc}, {OW[s]}, {ON}, {SWacc if s else 0}')
    fo = V.alloc(); fo2 = V.alloc()
    for jj in range(10):
        a.waitvm(xop[jj])
        for f in range(2):
            for p in range(2):
                a(f'ds_read_b128 {X[2*jj+p][f]}, {xr[p]} offset:{(jj % 3)*4096 + f*2048}')
        a('s_waitcnt lgkmcnt(0)')
        if jj + 3 < 10: xdma(jj + 3)
        for p in range(2):
            s = 2*jj + p
            for f in range(2):
                a(f'v_mfma_f32_16x16x32_bf16 {G[f]}, {X[s][f]}, {X[s][f]}, {G[f] if s else 0}')
                a(f'v_mfma_f32_16x16x32_bf16 {SS[f]}, {OW[s]}, {X[s][f]}, {SS[f] if s else 0}')
        if jj == 2:
            publish(0, u_flag, op_p0st, u_ok)
            stamp('flag0')
            a(f'''
            v_lshrrev_b32 {tv}, 3, {lane}
            v_and_b32 {tv2}, 7, {lane}
            v_lshlrev_b32 {tv2}, 4, {tv2}
            v_mul_u32_u24 {fo}, 3072, {tv}
            v_add_u32 {fo}, {fo}, {tv2}
            v_mul_u32_u24 {fo2}, 1280, {tv}
            v_add_u32 {fo2}, {fo2}, {tv2}
            s_lshl_b32 {t0}, {fkb}, 2
            s_add_u32 {t0}, {t0}, {wv}
            s_mul_i32 {t0}, {t0}, {16*3072}
            s_lshl_b32 {t1}, {fnb}, 7
            s_add_u32 {t0}, {t0}, {t1}
            s_add_u32 {t1}, {t0}, {8*3072 - 1024}
            s_lshl_b32 {t2}, {wv}, 11
            s_add_u32 {t2}, {t2}, {L_FFN}
            s_mov_b32 m0, {t2}
            s_add_u32 {t2}, {t2}, 8192
            buffer_load_dwordx4 {fo}, {rG}, {t0} offen lds
            buffer_load_dwordx4 {fo}, {rG}, {t1} offen offset:1024 lds
            s_mov_b32 m0, {t2}
            s_add_u32 {t2}, {t2}, 8192
            buffer_load_dwordx4 {fo}, {rU}, {t0} offen lds
            buffer_load_dwordx4 {fo}, {rU}, {t1} offen offset:1024 lds
            s_mov_b32 m0, {t2}
            s_lshl_b32 {t0}, {fnb}, 2
            s_add_u32 {t0}, {t0}, {wv}
            s_mul_i32 {t0}, {t0}, {16*1280}
            s_lshl_b32 {t1}, {fkb}, 7
            s_add_u32 {t0}, {t0}, {t1}
            s_add_u32 {t1}, {t0}, {8*1280 - 1024}
            buffer_load_dwordx4 {fo2}, {rD}, {t0} offen lds''')
            op_ffn = a(f'buffer_load_dwordx4 {fo2}, {rD}, {t1} offen offset:1024 lds')
    free(OW, owa, xr, xo, fo, fo2, xbase, xrot, xlds, u_flag)
    stamp('x_done')
    a('s_barrier')
    FG = [[A.alloc(4) for u in range(2)] for m in range(2)]; FD = [A.alloc(4) for u in range(2)]
    a(f'''
    v_lshrrev_b32 {tv}, 2, {col}
    v_and_b32 {tv2}, 3, {lane}
    v_lshlrev_b32 {tv2}, 3, {tv2}
    v_lshl_add_u32 {tv2}, {tv}, 7, {tv2}
    s_lshl_b32 {t0}, {wv}, 5
    v_add_u32 {tv2}, {t0}, {tv2}
    v_lshl_add_u32 {tv}, {grp}, 10, {tv2}
    v_lshl_add_u32 {tv2}, {grp}, 9, {tv2}''')
    for u in range(2):
        for j in range(2):
            for m in range(2):
                a(f'ds_read_b64_tr_b16 {FG[m][u][2*j:2*j+2]}, {tv} offset:{L_FFN + m*8192 + (32*u + 4*j)*128}')
            a(f'ds_read_b64_tr_b16 {FD[u][2*j:2*j+2]}, {tv2} offset:{L_FFN + 16384 + (32*u + 16*j)*128}')
    NM = [V.alloc(4), V.alloc(4)]
    CC = V.alloc(2)
    mean, ssq, raw, mb, key = [V.alloc() for _ in range(5)]
    sInv = S.alloc()
    a(f's_mov_b32 {sInv}, 0x3acccccd')
    for f in range(2):
        for k in (1, 2, 3):
            smask(sM, lanemask(lambda l: (l & 3) == k))
            a(f'v_cndmask_b32 {G[f][0]}, {G[f][0]}, {G[f][k]}, {sM}')
    a(f'''
    v_lshrrev_b32 {tv}, 2, {col}
    v_lshl_add_u32 {tv}, {tv}, 4, {col}
    v_lshlrev_b32 {tv}, 2, {tv}
    ds_bpermute_b32 {G[0][1]}, {tv}, {G[0][0]}
    ds_bpermute_b32 {G[1][1]}, {tv}, {G[1][0]}''')
    for f in range(2):
        a(f'''
        v_mul_f32 {SS[f][0]}, {sInv}, {SS[f][0]}
        v_cvt_pk_bf16_f32 {tv2}, -{SS[f][0]}, -{SS[f][0]}''')
        smask(sM, lanemask(lambda l: (l >> 4) <= 2))
        a(f'v_cndmask_b32 {NM[f][0]}, 0, {tv2}, {sM}\nv_cndmask_b32 {NM[f][1]}, 0, {tv2}, {sM}')
        smask(sM, lanemask(lambda l: (l >> 4) <= 1))
        a(f'v_cndmask_b32 {NM[f][2]}, 0, {tv2}, {sM}\nv_cndmask_b32 {NM[f][3]}, 0, {tv2}, {sM}')
    smask(sM, lanemask(lambda l: (l >> 4) & 1))
    GR = V.alloc(4)
    a(f'''
    v_cndmask_b32 {mean}, {SS[0][0]}, {SS[1][0]}, {sM}
    v_cndmask_b32 {raw}, {SS[0][1]}, {SS[1][1]}, {sM}
    s_waitcnt lgkmcnt(0)
    v_cndmask_b32 {ssq}, {G[0][1]}, {G[1][1]}, {sM}
    v_mul_f32 {tv}, {mean}, {mean}
    v_fma_f32 {ssq}, {ssq}, {sInv}, -{tv}
    v_max_f32 {ssq}, 0, {ssq}
    v_cvt_pk_bf16_f32 {ssq}, {ssq}, {ssq}
    v_lshlrev_b32 {ssq}, 16, {ssq}
    v_add_f32 {ssq}, 0x3727c5ac, {ssq}
    v_cvt_pk_bf16_f32 {ssq}, {ssq}, {ssq}
    v_lshlrev_b32 {ssq}, 16, {ssq}
    v_sqrt_f32 {ssq}, {ssq}
    v_cvt_pk_bf16_f32 {GR[1]}, {mean}, {ssq}
    v_and_b32 {ssq}, 0xffff0000, {GR[1]}
    v_lshlrev_b32 {mb}, 16, {GR[1]}
    v_rcp_f32 {CC[1]}, {ssq}
    v_fma_f32 {raw}, -{mb}, {SWacc[1]}, {raw}
    v_mul_f32 {CC[0]}, {LOG2E:#x}, {CC[1]}
    v_mul_f32 {raw}, {raw}, {CC[1]}
    v_cvt_pk_bf16_f32 {raw}, {raw}, {raw}
    v_ashrrev_i32 {tv}, 31, {raw}
    v_or_b32 {tv}, 0x80000000, {tv}
    v_xor_b32 {raw}, {raw}, {tv}
    v_and_b32 {raw}, 0xffff0000, {raw}
    s_lshl_b32 {t0}, {tb}, 2
    s_add_u32 {t0}, {t0}, {wv}
    s_lshl_b32 {t1}, {t0}, 5
    s_sub_u32 {t2}, 2047, {t1}
    v_and_b32 {tv2}, 31, {lane}
    v_sub_u32 {tv}, {t2}, {tv2}
    v_or_b32 {GR[0]}, {raw}, {tv}
    s_lshl_b32 {t2}, {wv}, 7
    s_add_u32 {t2}, {t2}, {L_ST}
    v_lshl_add_u32 {tv2}, {tv2}, 2, {t2}
    ds_write_b32 {tv2}, {GR[1]}
    v_mov_b32 {GR[2]}, {tag[0]}
    v_mov_b32 {GR[3]}, {tag[1]}''')
    def allmax(dst, src, tmp, full):
        a(f'v_max_u32_dpp {dst}, {src}, {src} row_ror:8 row_mask:0xf bank_mask:0xf')
        for n in (4, 2, 1):
            a(f'v_max_u32_dpp {dst}, {dst}, {dst} row_ror:{n} row_mask:0xf bank_mask:0xf')
        a(f'v_mov_b32 {tmp}, {dst}\nv_permlane16_swap_b32 {dst}, {tmp}\nv_max_u32 {dst}, {dst}, {tmp}')
        if full: a(f'v_mov_b32 {tmp}, {dst}\nv_permlane32_swap_b32 {dst}, {tmp}\nv_max_u32 {dst}, {dst}, {tmp}')
    allmax(key, GR[0], tv, False)
    a(f'''
    v_cmp_ne_u32 vcc, {key}, {GR[0]}
    v_cndmask_b32 {raw}, 0, {GR[0]}, vcc
    v_cndmask_b32 {tv2}, 0, 16, vcc''')
    allmax(key, raw, tv, False)
    a(f'''
    s_add_u32 {t1}, {t1}, {WS_CAND}
    s_cmp_eq_u32 {tb}, {hp}
    s_cselect_b32 {t1}, {t1}, {DROP}
    v_cmp_ge_u32 vcc, {GR[0]}, {key}
    s_mov_b32 exec_lo, vcc_lo
    s_mov_b32 exec_hi, 0
    buffer_store_dwordx4 {GR}, {tv2}, {rWS}, {t1} offen sc1''')
    setexec(FULL)
    free(mean, ssq, raw, mb, key, G, SS, SWacc, GR, ON)
    stamp('stats')

    a(f's_lshl_b32 {t1}, {hp}, 4')
    wait_flags(0, t1, 0, 15)
    stamp('hop0')
    l16b = V.alloc(); wsl = S.alloc(); wb = S.alloc()
    a(f'''
    v_add_u32 {l16b}, 4096, {l16}
    s_lshl_b32 {wsl}, {rho}, 1
    s_add_u32 {wsl}, {wsl}, {wv}
    s_mul_i32 {wb}, {hp}, 102400
    s_add_u32 {wb}, {wb}, {WS_WKV}''')
    def dma5(soff, ldsreg, ldsimm):
        a(f's_add_u32 {t1}, {ldsreg}, {ldsimm}\ns_mov_b32 m0, {t1}\ns_add_u32 {t1}, {t1}, 4096')
        for p in range(4): a(f'buffer_load_dwordx4 {l16}, {rWS}, {soff} offen offset:{p*1024} sc1 lds')
        a(f's_mov_b32 m0, {t1}')
        return a(f'buffer_load_dwordx4 {l16b}, {rWS}, {soff} offen sc1 lds')
    w5 = S.alloc()
    a(f's_mul_i32 {w5}, {wv}, 5120')
    wop = {}
    def wkv_dma(c):
        a(f'''
        s_sub_u32 {t0}, {wsl}, 20
        s_cmp_ge_u32 {wsl}, 20
        s_cselect_b32 {wsl}, {t0}, {wsl}
        s_mul_i32 {t0}, {wsl}, 5120
        s_add_u32 {t0}, {t0}, {wb}
        s_add_u32 {wsl}, {wsl}, 4''')
        wop[c] = dma5(t0, w5, L_WKV + c*20480)
    def wq_dma(i):
        a(f'''
        s_add_u32 {t2}, {wv}, {4*i}
        s_min_u32 {t2}, {t2}, 9
        s_add_u32 {t0}, {t2}, {rho}
        s_sub_u32 {t1}, {t0}, 10
        s_cmp_ge_u32 {t0}, 10
        s_cselect_b32 {t0}, {t1}, {t0}
        s_mul_i32 {t1}, {hp}, 10
        s_add_u32 {t0}, {t0}, {t1}
        s_mul_i32 {t0}, {t0}, 5120
        s_add_u32 {t0}, {t0}, {WS_WQ}
        s_mul_i32 {t2}, {t2}, 5120''')
        return dma5(t0, t2, L_WQ)
    def cs_dma():
        a(f'''
        s_mul_i32 {t0}, {hp}, 5120
        s_add_u32 {t0}, {t0}, {WS_CS}
        s_mov_b32 m0, {L_CS + 4096}
        s_lshl_b32 {t1}, {wv}, 10
        buffer_load_dwordx4 {l16b}, {rWS}, {t0} offen sc1 lds
        s_add_u32 {t0}, {t0}, {t1}
        s_add_u32 {t1}, {t1}, {L_CS}
        s_mov_b32 m0, {t1}''')
        return a(f'buffer_load_dwordx4 {l16}, {rWS}, {t0} offen sc1 lds')
    wkv_dma(0); wkv_dma(1)
    ka = [V.alloc(), V.alloc()]; qa = [V.alloc(), V.alloc()]; ca = [V.alloc(), V.alloc()]
    tv3 = V.alloc()
    a(f'''
    v_lshrrev_b32 {tv}, 3, {col}
    v_lshl_add_u32 {tv2}, {tv}, 1, {grp}
    v_and_b32 {tv2}, 3, {tv2}
    v_lshlrev_b32 {tv2}, 6, {tv2}
    v_mul_u32_u24 {tv}, 1280, {tv}
    v_and_b32 {tv3}, 3, {lane}
    v_lshl_add_u32 {tv2}, {tv3}, 4, {tv2}
    v_add_u32 {tv2}, {tv2}, {tv}
    v_bfe_u32 {tv}, {lane}, 2, 1
    v_mul_u32_u24 {ka[0]}, 2560, {tv}
    v_add_u32 {ka[0]}, {ka[0]}, {tv2}
    v_add_u32 {ka[1]}, 51200, {ka[0]}
    v_add_u32 {tv2}, {L_WQ}, {tv2}
    v_mul_u32_u24 {qa[0]}, 768, {tv}
    v_add_u32 {qa[0]}, {qa[0]}, {tv2}
    v_lshlrev_b32 {tv}, 8, {tv}
    v_sub_u32 {qa[1]}, {qa[0]}, {tv}
    v_lshrrev_b32 {tv}, 2, {col}
    v_lshl_add_u32 {tv}, {grp}, 3, {tv}
    v_min_u32 {ca[0]}, 19, {tv}
    v_add_u32 {tv}, 4, {tv}
    v_min_u32 {ca[1]}, 19, {tv}
    v_lshrrev_b32 {tv}, 1, {tv3}
    v_mul_u32_u24 {tv}, 40, {tv}
    v_add_u32 {tv}, {L_CS}, {tv}
    v_lshl_add_u32 {ca[0]}, {ca[0]}, 8, {tv}
    v_lshl_add_u32 {ca[1]}, {ca[1]}, 8, {tv}''')
    ACC = [V.alloc(20), V.alloc(20)]
    WB = [[V.alloc(4) for t in range(5)] for b in range(2)]
    def kv_reads(sl):
        for t in range(5):
            a(f'ds_read_b128 {WB[sl % 2][t]}, {ka[sl // 10]} offset:{(sl % 10)*5120 + t*256}')
    for c in range(5):
        a.waitvm(wop[c])
        a('s_barrier')
        if c == 0: stamp('w0')
        kv_reads(4*c)
        if c + 2 < 5: wkv_dma(c + 2)
        if c == 2: op_cs = cs_dma(); wop[4] = op_cs
        if c == 3: wq_dma(0); wq_dma(1)
        if c == 4: op_wq = wq_dma(2)
        for sl in range(4*c, 4*c + 4):
            if sl + 1 < 4*c + 4:
                kv_reads(sl + 1); a('s_waitcnt lgkmcnt(5)')
            elif c == 4:
                a(f'v_and_b32 {tv}, 1, {lane}\nv_mul_u32_u24 {tv}, 80, {tv}\nv_add_u32 {tv2}, {tv}, {ca[1]}\nv_add_u32 {tv}, {tv}, {ca[0]}')
                for t in range(5):
                    a(f'ds_read_b64_tr_b16 {WB[0][t][0:2]}, {tv} offset:{t*8}\nds_read_b64_tr_b16 {WB[0][t][2:4]}, {tv2} offset:{t*8}')
                a('s_waitcnt lgkmcnt(10)')
            else: a('s_waitcnt lgkmcnt(0)')
            for t in range(5):
                for f in range(2):
                    d = ACC[f].sub(4*t, 4)
                    a(f'v_mfma_f32_16x16x32_bf16 {d}, {WB[sl % 2][t]}, {X[sl][f]}, {d if sl else 0}')
    a('s_waitcnt lgkmcnt(0)')
    for t in range(5):
        for f in range(2):
            d = ACC[f].sub(4*t, 4)
            a(f'v_mfma_f32_16x16x32_bf16 {d}, {WB[0][t]}, {NM[f]}, {d}')
    free(ka, wsl, wb)
    stamp('kv_mfma')

    def softmax(P, dst):
        p = [x[k] for x in P for k in range(2)]
        T = V.alloc(2); U = V.alloc(2); E2 = V.alloc(20); S1 = V.alloc(2); S2 = V.alloc(2)
        a(f'v_max3_f32 {T[1]}, {p[0]}, {p[1]}, {p[2]}\nv_min3_f32 {U[1]}, {p[0]}, {p[1]}, {p[2]}')
        for k in range(3, 19, 2):
            a(f'v_max3_f32 {T[1]}, {T[1]}, {p[k]}, {p[k+1]}\nv_min3_f32 {U[1]}, {U[1]}, {p[k]}, {p[k+1]}')
        a(f'''
        v_max_f32 {T[1]}, {T[1]}, {p[19]}
        v_min_f32 {U[1]}, {U[1]}, {p[19]}
        v_mul_f32 {T[1]}, {T[1]}, {CC[0]}
        v_mul_f32 {U[1]}, {U[1]}, {CC[0]}''')
        for k in range(10):
            e2 = E2.sub(2*k, 2)
            a(f'v_pk_fma_f32 {e2}, {P[k]}, {CC}, {U} op_sel:[0,0,1] op_sel_hi:[1,0,1] neg_lo:[1,0,0] neg_hi:[1,0,0]')
            a(f'v_pk_fma_f32 {P[k]}, {P[k]}, {CC}, {T} op_sel:[0,0,1] op_sel_hi:[1,0,1] neg_lo:[0,0,1] neg_hi:[0,0,1]')
        for k in range(10):
            e2 = E2.sub(2*k, 2)
            a(f'v_exp_f32 {P[k][0]}, {P[k][0]}\nv_exp_f32 {P[k][1]}, {P[k][1]}\nv_exp_f32 {e2[0]}, {e2[0]}\nv_exp_f32 {e2[1]}, {e2[1]}')
            if k == 1: a(f'v_pk_add_f32 {S1}, {P[0]}, {P[1]}\nv_pk_add_f32 {S2}, {E2[0:2]}, {e2}')
            if k > 1: a(f'v_pk_add_f32 {S1}, {S1}, {P[k]}\nv_pk_add_f32 {S2}, {S2}, {e2}')
        a(f'''
        v_add_f32 {S1[0]}, {S1[0]}, {S1[1]}
        v_add_f32 {S2[0]}, {S2[0]}, {S2[1]}
        v_rcp_f32 {S1[0]}, {S1[0]}
        v_rcp_f32 {S2[0]}, {S2[0]}''')
        for k in range(10):
            a(f'v_pk_mul_f32 {P[k]}, {P[k]}, {S1} op_sel_hi:[1,0]\nv_cvt_pk_bf16_f32 {dst(k)}, {P[k][0]}, {P[k][1]}')
        for k in range(10):
            e2 = E2.sub(2*k, 2)
            a(f'v_pk_mul_f32 {e2}, {e2}, {S2} op_sel_hi:[1,0]\nv_cvt_pk_bf16_f32 {dst(10+k)}, {e2[0]}, {e2[1]}')
        free(T, U, E2, S1, S2)

    for k in range(20): a(f'v_permlane16_swap_b32 {ACC[0][k]}, {ACC[1][k]}')
    ROW = V.alloc(32); ta = V.alloc()
    a(f'''
    v_and_b32 {tv}, 31, {lane}
    s_lshl_b32 {t0}, {wv}, 12
    v_lshl_add_u32 {ta}, {tv}, 7, {t0}
    v_and_b32 {tv}, 7, {lane}
    v_lshl_add_u32 {ta}, {tv}, 4, {ta}
    v_lshrrev_b32 {tv}, 5, {lane}
    v_lshl_add_u32 {ta}, {tv}, 14, {ta}
    v_mov_b32 {ROW[30]}, 0x3f80
    v_mov_b32 {ROW[31]}, 0''')
    for k in range(10):
        vp = ACC[1].sub(2*k, 2)
        a(f'v_pk_mul_f32 {vp}, {vp}, {CC} op_sel:[0,1] op_sel_hi:[1,1]\nv_cvt_pk_bf16_f32 {ROW[20+k]}, {vp[0]}, {vp[1]}')
    def trw(n): a(f'v_xor_b32 {tv}, {n*16}, {ta}\nds_write_b128 {tv}, {ROW.sub(4*n, 4)} offset:{L_TR}')
    for n in (5, 6, 7): trw(n)
    softmax([ACC[0].sub(2*k, 2) for k in range(10)], lambda n: ROW[n])
    for n in range(5): trw(n)
    tra = [V.alloc() for _ in range(4)]
    a(f'''
    v_lshrrev_b32 {tv}, 2, {col}
    v_lshl_add_u32 {tv}, {grp}, 2, {tv}
    v_bfe_u32 {tv2}, {lane}, 1, 1
    v_and_b32 {tv3}, 7, {tv}
    v_xor_b32 {tv2}, {tv2}, {tv3}
    v_lshlrev_b32 {tv2}, 4, {tv2}
    v_lshl_add_u32 {tv2}, {tv}, 7, {tv2}
    v_and_b32 {tv}, 1, {lane}
    v_lshl_add_u32 {tv2}, {tv}, 3, {tv2}
    s_lshr_b32 {t0}, {wv}, 1
    s_lshl_b32 {t0}, {t0}, 14
    v_add_u32 {tra[0]}, {t0}, {tv2}
    v_xor_b32 {tra[1]}, 32, {tra[0]}
    v_xor_b32 {tra[2]}, 64, {tra[0]}
    s_and_b32 {t1}, {wv}, 1
    s_lshl_b32 {t0}, {t1}, 5
    v_xor_b32 {tra[3]}, {t0}, {tra[2]}''')
    a('s_waitcnt lgkmcnt(0)\ns_barrier')
    stamp('phik')
    free(ROW, ta)
    TF = [[V.alloc(4) for ct in range(4)] for ks in range(4)]
    KD = [V.alloc(4) for _ in range(3)]
    for ks in range(4):
        for ct in range(4):
            for j in range(2):
                a(f'ds_read_b64_tr_b16 {TF[ks][ct][2*j:2*j+2]}, {tra[ct]} offset:{L_TR + 4096*ks + 2048*j}')
        if ks >= 1:
            a('s_waitcnt lgkmcnt(8)')
            for t in range(3): a(f'v_mfma_f32_16x16x32_bf16 {KD[t]}, {TF[ks-1][t]}, {TF[ks-1][3]}, {KD[t] if ks > 1 else 0}')
    a('s_waitcnt lgkmcnt(0)')
    for t in range(3): a(f'v_mfma_f32_16x16x32_bf16 {KD[t]}, {TF[3][t]}, {TF[3][3]}, {KD[t]}')
    lid = S.alloc()
    a(f'''
    s_add_u32 {t0}, {t1}, 7
    v_lshlrev_b32 {tv}, {t0}, {grp}
    v_lshl_add_u32 {tv}, {col}, 4, {tv}
    s_lshl_b32 {t2}, 4, {t0}
    s_mul_i32 {t0}, {t1}, 768
    s_lshl_b32 {t1}, {t1}, 3
    v_add_u32 {tv2}, {t1}, {col}
    v_cmp_le_u32 vcc, 8, {tv2}
    v_mov_b32 {tv2}, {DROP}
    v_cndmask_b32 {tv}, {tv2}, {tv}, vcc
    s_lshl_b32 {lid}, {hp}, 4
    s_add_u32 {lid}, {lid}, {tb}
    s_lshl_b32 {t1}, {lid}, 12
    s_add_u32 {t0}, {t0}, {t1}
    s_lshr_b32 {t1}, {wv}, 1
    s_mul_i32 {t1}, {t1}, 1920
    s_add_u32 {t0}, {t0}, {t1}
    s_add_u32 {t0}, {t0}, {WS_KVP - 128}
    s_add_u32 {t2}, {t2}, {t0}''')
    P1 = V.alloc(4); P2 = V.alloc(4)
    a(f'''
    v_cvt_pk_bf16_f32 {P1[0]}, {KD[0][0]}, {KD[0][1]}
    v_cvt_pk_bf16_f32 {P1[1]}, {KD[0][2]}, {KD[0][3]}
    v_cvt_pk_bf16_f32 {P1[2]}, {KD[1][0]}, {KD[1][1]}
    v_cvt_pk_bf16_f32 {P1[3]}, {KD[1][2]}, {KD[1][3]}
    v_cvt_pk_bf16_f32 {P2[0]}, {KD[2][0]}, {KD[2][1]}
    v_cvt_pk_bf16_f32 {P2[1]}, {KD[2][2]}, {KD[2][3]}
    buffer_store_dwordx4 {P1}, {tv}, {rWS}, {t0} offen sc1
    v_permlane16_swap_b32 {P2[0]}, {P2[2]}
    v_permlane16_swap_b32 {P2[1]}, {P2[3]}''')
    setexec(0xffff)
    op_kvp = a(f'buffer_store_dwordx4 {P2}, {tv}, {rWS}, {t2} offen sc1')
    setexec(FULL)
    free(TF, KD, tra, P1, P2)
    stamp('kvp_st')
    publish(1, lid, op_kvp)
    stamp('flag1')

    k1, ms1, k2, ms2 = [S.alloc() for _ in range(4)]
    C0 = V.alloc(4); C1 = V.alloc(4); top = V.alloc()
    L = a.label('cand'); E = a.label('canded')
    a(f'''
    v_lshlrev_b32 {tv2}, 5, {lane}
    s_mov_b32 {t0}, {WS_CAND}
    s_mov_b32 {t3}, 0
    {L}:''')
    a.lines.append(f'    buffer_load_dwordx4 {C0}, {tv2}, {rWS}, {t0} offen sc1')
    a.lines.append(f'    buffer_load_dwordx4 {C1}, {tv2}, {rWS}, {t0} offen offset:16 sc1')
    a(f'''
    s_add_u32 {t3}, {t3}, 1
    s_cmp_gt_u32 {t3}, 0x8000
    s_cbranch_scc1 {E}
    s_waitcnt vmcnt(0)
    v_cmp_ne_u64 vcc, {tag}, {C0[2:4]}
    v_cmp_ne_u64 {sM}, {tag}, {C1[2:4]}
    s_or_b64 vcc, vcc, {sM}
    s_cbranch_scc1 {L}
    {E}:
    s_waitcnt vmcnt(0)''')
    allmax(top, C0[0], tv, True)
    a(f'''
    v_cmp_eq_u32 vcc, {top}, {C0[0]}
    s_ff1_i32_b64 {t0}, vcc
    v_readlane_b32 {k1}, {C0[0]}, {t0}
    v_readlane_b32 {ms1}, {C0[1]}, {t0}
    v_cndmask_b32 {C0[0]}, {C0[0]}, {C1[0]}, vcc
    v_cndmask_b32 {C0[1]}, {C0[1]}, {C1[1]}, vcc''')
    allmax(top, C0[0], tv, True)
    XS = V.alloc(8); MR = V.alloc(2); UP = V.alloc(2)
    a(f'''
    v_cmp_eq_u32 vcc, {top}, {C0[0]}
    s_ff1_i32_b64 {t0}, vcc
    v_readlane_b32 {k2}, {C0[0]}, {t0}
    v_readlane_b32 {ms2}, {C0[1]}, {t0}
    s_mov_b32 vcc_lo, 0xaaaaaaaa
    s_mov_b32 vcc_hi, 0xaaaaaaaa
    v_mov_b32 {tv}, {k1}
    v_mov_b32 {tv2}, {k2}
    v_cndmask_b32 {tv}, {tv}, {tv2}, vcc
    v_and_b32 {tv}, 2047, {tv}
    v_sub_u32 {tv}, 2047, {tv}
    v_mul_u32_u24 {tv}, 1280, {tv}
    v_lshl_add_u32 {tv}, {grp}, 4, {tv}
    s_lshl_b32 {t0}, {fkb}, 7''')
    setexec(lanemask(lambda l: (l & 15) < 4))
    a(f'buffer_load_dwordx4 {XS[0:4]}, {tv}, {rX}, {t0} offen')
    op_xs = a(f'buffer_load_dwordx4 {XS[4:8]}, {tv}, {rX}, {t0} offen offset:64')
    setexec(FULL)
    a(f'''
    v_mov_b32 {tv}, {ms1}
    v_mov_b32 {tv2}, {ms2}
    v_cndmask_b32 {tv}, {tv}, {tv2}, vcc
    v_and_b32 {tv2}, 0xffff0000, {tv}
    v_rcp_f32 {MR[0]}, {tv2}
    v_lshlrev_b32 {tv}, 16, {tv}
    v_mul_f32 {MR[1]}, {tv}, {MR[0]}''')
    a.waitvm(op_xs)
    for k in range(8):
        a(f'''
        v_lshlrev_b32 {UP[0]}, 16, {XS[k]}
        v_and_b32 {UP[1]}, 0xffff0000, {XS[k]}
        v_pk_fma_f32 {UP}, {UP}, {MR}, {MR} op_sel:[0,0,1] op_sel_hi:[1,0,1] neg_lo:[0,0,1] neg_hi:[0,0,1]
        v_cvt_pk_bf16_f32 {XS[k]}, {UP[0]}, {UP[1]}''')
    for u in range(2):
        a(f'v_mfma_f32_16x16x32_bf16 {C0}, {FG[0][u]}, {XS.sub(4*u, 4)}, {C0 if u else 0}')
        a(f'v_mfma_f32_16x16x32_bf16 {C1}, {FG[1][u]}, {XS.sub(4*u, 4)}, {C1 if u else 0}')
    fid = S.alloc()
    a(f'''
    s_mov_b32 vcc_lo, 0xcccccccc
    s_mov_b32 vcc_hi, 0xcccccccc
    v_lshlrev_b32 {tv}, 4, {col}
    v_lshl_add_u32 {tv}, {grp}, 6, {tv}
    s_mul_i32 {fid}, {fnb}, 10
    s_add_u32 {fid}, {fid}, {fkb}
    s_lshl_b32 {t0}, {fid}, 2
    s_add_u32 {t0}, {t0}, {wv}
    s_lshl_b32 {t0}, {t0}, 8
    s_add_u32 {t0}, {t0}, {WS_GP}
    s_add_u32 {t0}, {t0}, {u_ok}''')
    for k in range(4): a(f'v_cndmask_b32 {C0[k]}, {C0[k]}, {C1[k]}, vcc')
    setexec(lanemask(lambda l: (l & 15) < 4))
    op_gp = a(f'buffer_store_dwordx4 {C0}, {tv}, {rWS}, {t0} offen sc1')
    setexec(FULL)
    free(C0, C1, top, XS, MR, UP, FG, ms1, ms2)
    stamp('ffnA')

    wo = [V.alloc() for _ in range(5)]
    for i in range(5):
        a(f'''
        v_add_u32 {tv}, {i*64}, {lane}
        v_mul_u32_u24 {tv2}, 6554, {tv}
        v_lshrrev_b32 {tv2}, 16, {tv2}
        v_mul_u32_u24 {tv2}, {1280 - 160}, {tv2}
        v_lshl_add_u32 {wo[i]}, {tv}, 4, {tv2}''')
        if 0 < i < 4: a(f'v_subrev_u32 {wo[i]}, {i*1024}, {wo[i]}')
    wob = S.alloc()
    a(f'''
    s_lshr_b32 {wob}, {hp}, 1
    s_mul_i32 {wob}, {wob}, 160
    s_mul_i32 {t0}, {wv}, {32*1280}
    s_add_u32 {wob}, {wob}, {t0}''')
    def wo_dma(i):
        a(f'''
        s_add_u32 {t0}, {wob}, {i*128*1280}
        s_add_u32 {t1}, {w5}, {L_WO + i*20480}
        s_mov_b32 m0, {t1}
        s_add_u32 {t1}, {t1}, 4096''')
        for p in range(4): a(f'buffer_load_dwordx4 {wo[p]}, {rWO}, {t0} offen offset:{p*1024} lds')
        a(f's_mov_b32 m0, {t1}')
        return a(f'buffer_load_dwordx4 {wo[4]}, {rWO}, {t0} offen lds')
    QA = [ACC[0].sub(0, 12), ACC[1].sub(0, 12)]
    def q_reads(sl):
        for t in range(3):
            a(f'ds_read_b128 {WB[sl % 2][t]}, {qa[t // 2]} offset:{sl*2560 + t*256}')
    q_reads(0)
    for sl in range(20):
        if sl < 19:
            q_reads(sl + 1); a('s_waitcnt lgkmcnt(3)')
        else:
            a(f'v_and_b32 {tv3}, 1, {lane}\nv_mul_u32_u24 {tv}, 24, {tv3}\nv_add_u32 {tv2}, {tv}, {ca[1]}\nv_add_u32 {tv}, {tv}, {ca[0]}')
            for t in range(3):
                if t == 2: a(f'v_lshlrev_b32 {tv3}, 3, {tv3}\nv_sub_u32 {tv}, {tv}, {tv3}\nv_sub_u32 {tv2}, {tv2}, {tv3}')
                a(f'ds_read_b64_tr_b16 {WB[0][t][0:2]}, {tv} offset:{160 + t*8}\nds_read_b64_tr_b16 {WB[0][t][2:4]}, {tv2} offset:{160 + t*8}')
            a('s_waitcnt lgkmcnt(6)')
        for t in range(3):
            for f in range(2):
                d = QA[f].sub(4*t, 4)
                a(f'v_mfma_f32_16x16x32_bf16 {d}, {WB[sl % 2][t]}, {X[sl][f]}, {d if sl else 0}')
        if sl == 3: publish(2, fid, op_gp, u_ok)
        if sl in (4, 7, 10, 13, 16): op_wo = wo_dma((sl - 4) // 3)
    a('s_waitcnt lgkmcnt(0)')
    for t in range(3):
        for f in range(2):
            d = QA[f].sub(4*t, 4)
            a(f'v_mfma_f32_16x16x32_bf16 {d}, {WB[0][t]}, {NM[f]}, {d}')
    free(WB, qa, ca, NM, X, wob, w5)
    stamp('q_mfma')
    for k in range(12): a(f'v_permlane16_swap_b32 {QA[0][k]}, {QA[1][k]}')
    PQ = V.alloc(20)
    def pq_dst(n):
        if n >= 16: return PQ[n]
        return PQ[4*((n & 7) >> 1) + 2*(n >> 3) + (n & 1)]
    softmax([QA[0].sub(2*k, 2) for k in range(6)] + [QA[1].sub(2*k, 2) for k in range(4)], pq_dst)
    free(ACC)
    stamp('phiq')

    a(f's_lshl_b32 {t1}, {hp}, 4')
    wait_flags(1, t1, 0, 16)
    stamp('hop1')
    GA = [V.alloc(4) for _ in range(16)]; gop = []
    a(f'''
    v_lshlrev_b32 {tv}, 4, v0
    s_lshl_b32 {t0}, {hp}, 16
    s_add_u32 {t0}, {t0}, {WS_KVP}''')
    for p in range(16):
        gop.append(a(f'buffer_load_dwordx4 {GA[p]}, {tv}, {rWS}, {t0} offen sc1'))
        if p < 15: a(f's_add_u32 {t0}, {t0}, 4096')
    ksa = V.alloc(); na = [V.alloc(), V.alloc()]; tv4 = V.alloc()
    a(f'''
    v_subrev_u32 {tv}, 120, v0
    v_min_u32 {tv}, {tv}, v0
    v_sub_u32 {ksa}, v0, {tv}
    v_lshlrev_b32 {ksa}, 4, {ksa}
    v_lshrrev_b32 {tv2}, 3, {tv}
    v_and_b32 {tv3}, 7, {tv}
    v_cmp_le_u32 vcc, 40, {tv}
    v_subrev_u32 {tv}, 40, {tv}
    v_lshrrev_b32 {tv4}, 4, {tv}
    v_cndmask_b32 {tv2}, {tv2}, {tv4}, vcc
    v_and_b32 {tv}, 15, {tv}
    v_add_u32 {tv}, 8, {tv}
    v_cndmask_b32 {tv3}, {tv3}, {tv}, vcc
    v_lshl_add_u32 {ksa}, {tv2}, 4, {ksa}
    v_mul_u32_u24 {tv3}, 80, {tv3}
    v_add_u32 {ksa}, {ksa}, {tv3}
    v_add_u32 {ksa}, {L_KVS}, {ksa}
    v_cmp_gt_u32 vcc, 240, v0
    v_mov_b32 {tv}, {L_DUMMY}
    v_cndmask_b32 {ksa}, {tv}, {ksa}, vcc
    v_bfe_u32 {tv}, {lane}, 3, 2
    v_and_b32 {tv2}, 3, {lane}
    v_lshl_add_u32 {tv}, {tv}, 2, {tv2}
    v_mul_u32_u24 {tv}, 80, {tv}
    v_lshrrev_b32 {tv2}, 5, {lane}
    v_mul_u32_u24 {tv2}, 1920, {tv2}
    v_add_u32 {tv}, {tv}, {tv2}
    v_add_u32 {tv}, {L_KVS}, {tv}
    v_bfe_u32 {tv3}, {lane}, 4, 1
    v_mul_u32_u24 {tv3}, 640, {tv3}
    v_sub_u32 {tv2}, {tv}, {tv3}
    v_add_u32 {tv2}, 1280, {tv2}
    v_mov_b32 {tv3}, {L_ZERO}''')
    smask(sM, lanemask(lambda l: ((l >> 2) & 1) == (l >> 5)))
    a(f'v_cndmask_b32 {na[0]}, {tv3}, {tv}, {sM}\nv_cndmask_b32 {na[1]}, {tv3}, {tv2}, {sM}')
    SUM = V.alloc(8); sLo, sHi = S.alloc(), S.alloc()
    a(f's_mov_b32 {sLo}, 0x3f80\ns_mov_b32 {sHi}, 0x3f800000')
    for k in range(8): a(f'v_mov_b32 {SUM[k]}, 0')
    for p in range(16):
        a.waitvm(gop[p])
        for k in range(4):
            a(f'v_dot2c_f32_bf16 {SUM[2*k]}, {sLo}, {GA[p][k]}\nv_dot2c_f32_bf16 {SUM[2*k+1]}, {sHi}, {GA[p][k]}')
    for k in range(4): a(f'v_cvt_pk_bf16_f32 {GA[0][k]}, {SUM[2*k]}, {SUM[2*k+1]}')
    a(f'ds_write_b128 {ksa}, {GA[0]}\ns_waitcnt lgkmcnt(0)\ns_barrier')
    stamp('kvsum')
    for t in range(2):
        for s in range(5): a(f'ds_read_b128 {GA[1 + 5*t + s]}, {na[t]} offset:{16*s}')
    N0 = V.alloc(16); N1 = V.alloc(16)
    a('s_waitcnt lgkmcnt(0)')
    for s in range(5):
        a(f'v_mfma_f32_32x32x16_bf16 {N1}, {GA[6+s]}, {PQ.sub(4*s, 4)}, {N1 if s else 0}')
    for s in range(5):
        a(f'v_mfma_f32_32x32x16_bf16 {N0}, {GA[1+s]}, {PQ.sub(4*s, 4)}, {N0 if s else 0}')
    RD = V.alloc(2); O0, O1, O2 = V.alloc(4), V.alloc(4), V.alloc(4)
    a(f'''
    s_lshl_b32 {t0}, {wv}, 1
    v_and_b32 {tv}, 1, {grp}
    v_add_u32 {tv}, {t0}, {tv}
    v_mul_u32_u24 {tv}, 20480, {tv}
    v_lshl_add_u32 {tv}, {col}, 4, {tv}
    v_lshrrev_b32 {tv2}, 5, {lane}
    v_lshl_add_u32 {tv}, {tv2}, 9, {tv}
    s_mul_i32 {t0}, {tb}, 163840
    s_add_u32 {t0}, {t0}, {WS_O}
    s_lshl_b32 {t1}, {hp}, 8
    s_add_u32 {t1}, {t1}, {t0}
    s_add_u32 {t1}, {t1}, 16384
    s_lshl_b32 {t2}, {hp}, 10
    s_add_u32 {t0}, {t0}, {t2}
    v_add_f32 {RD[0]}, 0x358637bd, {N1[4]}
    v_rcp_f32 {RD[0]}, {RD[0]}''')
    for k in range(2):
        pr = N1.sub(2*k, 2)
        a(f'v_pk_mul_f32 {pr}, {pr}, {RD} op_sel_hi:[1,0]\nv_cvt_pk_bf16_f32 {O2[k]}, {pr[0]}, {pr[1]}')
    for k in range(8):
        pr = N0.sub(2*k, 2)
        dst = (O0, O1)[(k >> 1) & 1][2*(k >> 2) + (k & 1)]
        a(f'v_pk_mul_f32 {pr}, {pr}, {RD} op_sel_hi:[1,0]\nv_cvt_pk_bf16_f32 {dst}, {pr[0]}, {pr[1]}')
    a(f'''
    v_permlane32_swap_b32 {O2[0]}, {O2[2]}
    v_permlane32_swap_b32 {O2[1]}, {O2[3]}
    buffer_store_dwordx4 {O0}, {tv}, {rWS}, {t0} offen sc1
    buffer_store_dwordx4 {O1}, {tv}, {rWS}, {t0} offen offset:256 sc1''')
    setexec(0xffffffff)
    op_o = a(f'buffer_store_dwordx4 {O2}, {tv}, {rWS}, {t1} offen sc1')
    setexec(FULL)
    free(GA, ksa, na, SUM, sLo, sHi, N0, N1, RD, O0, O1, O2, PQ, CC)
    stamp('o_st')
    a(f's_lshl_b32 {lid}, {tb}, 4\ns_add_u32 {lid}, {lid}, {hp}')
    publish(3, lid, op_o)
    stamp('flag3')

    otf = S.alloc(); ob = S.alloc(); epl = S.alloc()
    a(f'''
    s_and_b32 {otf}, {hp}, 1
    s_lshl_b32 {otf}, {otf}, 2
    s_add_u32 {otf}, {otf}, {wv}
    s_lshl_b32 {t0}, {tb}, 3
    s_add_u32 {t1}, {otf}, {t0}
    s_mul_i32 {ob}, {t1}, {16*1280}
    s_lshr_b32 {t0}, {hp}, 1
    s_mul_i32 {t0}, {t0}, 160
    s_add_u32 {ob}, {ob}, {t0}
    s_lshl_b32 {epl}, {wv}, 12
    s_add_u32 {epl}, {epl}, {L_EP}
    s_mov_b32 m0, {epl}
    v_mov_b32 {tv}, {DROP}''')
    smask(sM, 0xffffffff)
    a(f'v_cndmask_b32 {wo[2]}, {tv}, {wo[2]}, {sM}')
    for p in range(3): op_res = a(f'buffer_load_dwordx4 {wo[p]}, {rX}, {ob} offen offset:{p*1024} lds')
    a(f's_mul_i32 {t1}, {fnb}, 10')
    wait_flags(2, t1, 0, 10)
    GB = [V.alloc(4) for _ in range(10)]; gop = []
    a(f'''
    v_and_b32 {tv}, 3, {lane}
    v_lshlrev_b32 {tv}, 4, {tv}
    v_lshl_add_u32 {tv}, {grp}, 6, {tv}
    v_lshrrev_b32 {tv2}, 2, {col}
    v_lshl_add_u32 {tv}, {tv2}, 8, {tv}
    s_mul_i32 {t0}, {fnb}, 10240
    s_add_u32 {t0}, {t0}, {WS_GP}''')
    for p in range(10):
        gop.append(a(f'buffer_load_dwordx4 {GB[p]}, {tv}, {rWS}, {t0} offen offset:{(p % 4)*1024} sc1'))
        if p % 4 == 3: a(f's_add_u32 {t0}, {t0}, 4096')
    for p in range(1, 10):
        a.waitvm(gop[p])
        a(f'v_pk_add_f32 {GB[0][0:2]}, {GB[0][0:2]}, {GB[p][0:2]}\nv_pk_add_f32 {GB[0][2:4]}, {GB[0][2:4]}, {GB[p][2:4]}')
    for k in range(4):
        a(f'''
        v_mul_f32 {GB[1][k]}, 0xbfb8aa3b, {GB[0][k]}
        v_exp_f32 {GB[1][k]}, {GB[1][k]}
        v_mul_f32_dpp {GB[2][k]}, {GB[0][k]}, {GB[0][k]} quad_perm:[2,3,0,1] row_mask:0xf bank_mask:0xf
        v_add_f32 {GB[1][k]}, 1.0, {GB[1][k]}
        v_rcp_f32 {GB[1][k]}, {GB[1][k]}''')
    for k in range(4): a(f'v_mul_f32 {GB[1][k]}, {GB[1][k]}, {GB[2][k]}')
    H = V.alloc(8)
    a(f'v_cvt_pk_bf16_f32 {H[0]}, {GB[1][0]}, {GB[1][1]}\nv_cvt_pk_bf16_f32 {H[1]}, {GB[1][2]}, {GB[1][3]}')
    for sub in (1, 2, 3):
        for e in range(2):
            a(f'v_mov_b32_dpp {H[2*sub+e]}, {H[e]} row_shl:{4*sub} row_mask:0xf bank_mask:0xf bound_ctrl:1')
    for u in range(2):
        a(f'v_mfma_f32_16x16x32_bf16 {GB[3]}, {H.sub(4*u, 4)}, {FD[u]}, {GB[3] if u else 0}')
    a(f'''
    v_lshlrev_b32 {tv}, 2, {lane}
    s_lshl_b32 {t0}, {fid}, 2
    s_add_u32 {t0}, {t0}, {wv}
    s_lshl_b32 {t0}, {t0}, 6
    s_add_u32 {t0}, {t0}, {WS_YP}
    s_add_u32 {t0}, {t0}, {u_ok}
    s_add_u32 {t1}, {t0}, 61440''')
    setexec(0xffff)
    a(f'buffer_store_dword {GB[3][0]}, {tv}, {rWS}, {t0} offen sc1')
    op_yp = a(f'buffer_store_dword {GB[3][1]}, {tv}, {rWS}, {t1} offen sc1')
    setexec(FULL)
    free(GB, H, FD)
    publish(4, fid, op_yp, u_ok)
    stamp('ffnB')
    OA = V.alloc(20); XR = V.alloc(10); ea = V.alloc(); MR = V.alloc(2)
    a(f'''
    v_mul_u32_u24 {ea}, 160, {col}
    v_mad_u32_u24 {ea}, {grp}, 40, {ea}
    v_add_u32 {ea}, {epl}, {ea}
    s_lshl_b32 {t0}, {otf}, 6
    s_add_u32 {t0}, {t0}, {L_ST}
    v_lshl_add_u32 {tv}, {col}, 2, {t0}
    ds_read_b32 {tv}, {tv}''')
    for t in range(5): a(f'ds_read_b64 {XR.sub(2*t, 2)}, {ea} offset:{8*t}')
    a(f'''
    s_waitcnt lgkmcnt(0)
    v_and_b32 {tv2}, 0xffff0000, {tv}
    v_rcp_f32 {MR[0]}, {tv2}
    v_lshlrev_b32 {tv}, 16, {tv}
    v_mul_f32 {MR[1]}, {tv}, {MR[0]}
    v_add_f32 {MR[0]}, 1.0, {MR[0]}''')
    for k in range(10):
        pr = OA.sub(2*k, 2)
        a(f'''
        v_lshlrev_b32 {pr[0]}, 16, {XR[k]}
        v_and_b32 {pr[1]}, 0xffff0000, {XR[k]}
        v_pk_fma_f32 {pr}, {pr}, {MR}, {MR} op_sel:[0,0,1] op_sel_hi:[1,0,1] neg_lo:[0,0,1] neg_hi:[0,0,1]''')
    free(MR)
    pa = [V.alloc() for _ in range(4)]
    a(f'''
    v_lshrrev_b32 {tv}, 2, {col}
    v_mul_u32_u24 {tv}, 160, {tv}
    v_and_b32 {tv2}, 3, {lane}
    v_mad_u32_u24 {tv}, {tv2}, 40, {tv}
    v_lshrrev_b32 {tv2}, 1, {grp}
    v_mul_u32_u24 {tv2}, 3200, {tv2}
    v_and_b32 {tv3}, 1, {grp}
    v_mul_u32_u24 {tv3}, 640, {tv3}
    v_add3_u32 {pa[0]}, {tv}, {tv2}, {tv3}
    v_add_u32 {pa[1]}, 51200, {pa[0]}
    v_mul_u32_u24 {tv2}, 6400, {grp}
    v_add_u32 {tv}, 2560, {tv}
    v_add_u32 {pa[2]}, {tv}, {tv2}
    v_add_u32 {pa[3]}, 51200, {pa[2]}''')
    OF = [V.alloc(4) for _ in range(20)]
    WF = {}
    def wo_reads(s):
        for t in range(5):
            for j in range(2):
                if s < 16: ad, off = pa[s // 8], (s % 8)*6400 + j*1280 + 8*t
                else: ad, off = pa[2 + (s - 16) // 2], ((s - 16) % 2)*25600 + j*3200 + 8*t
                a(f'ds_read_b64_tr_b16 {WF[s][t][2*j:2*j+2]}, {ad} offset:{L_WO + off}')
    NPRE = 17
    for s in range(NPRE):
        WF[s] = [(A if s < 12 else V).alloc(4) for t in range(5)]
        wo_reads(s)
        a('s_waitcnt lgkmcnt(5)')
    for s in range(NPRE, 20): WF[s] = WF[s - NPRE]
    stamp('wo_rd')
    a(f's_lshl_b32 {t1}, {tb}, 4')
    wait_flags(3, t1, 0, 16)
    stamp('hop2')
    a(f'''
    s_mul_i32 {t0}, {tb}, 163840
    s_mul_i32 {t1}, {otf}, 20480
    s_add_u32 {t0}, {t0}, {t1}
    s_add_u32 {t0}, {t0}, {WS_O}''')
    oop = []
    for s in range(20):
        oop.append(a(f'buffer_load_dwordx4 {OF[s]}, {l16}, {rWS}, {t0} offen offset:{(s % 4)*1024} sc1'))
        if s % 4 == 3: a(f's_add_u32 {t0}, {t0}, 4096')
    a(f'''
    s_or_b32 {t0}, s2, {wv}
    s_cmp_eq_u32 {t0}, 0
    s_cselect_b32 {t0}, 0, {DROP}''')
    setexec(1)
    a(f'buffer_store_dwordx2 {vtag}, {vzero}, {rWS}, {t0} offen sc1')
    setexec(FULL)
    for s in range(20):
        a.waitvm(oop[s], 'lgkmcnt(0)' if s == NPRE else '')
        for t in range(5):
            d = OA.sub(4*t, 4)
            a(f'v_mfma_f32_16x16x32_bf16 {d}, {WF[s][t]}, {OF[s]}, {d}')
        if 1 <= s <= 20 - NPRE:
            if s > 1: a('s_waitcnt lgkmcnt(5)')
            wo_reads(NPRE + s - 1)
    stamp('p3')
    for sel, kk in enumerate((k1, k2)):
        E = a.label('nosel')
        a(f'''
        s_and_b32 {t0}, {kk}, 2047
        s_sub_u32 {t2}, 2047, {t0}
        s_lshr_b32 {t0}, {t2}, 4
        s_lshl_b32 {t1}, {tb}, 3
        s_add_u32 {t1}, {t1}, {otf}
        s_cmp_eq_u32 {t0}, {t1}
        s_cbranch_scc0 {E}
        s_lshr_b32 {t0}, {hp}, 1
        s_mul_i32 {t1}, {t0}, 80
        s_lshr_b32 {t0}, {t1}, 6
        s_lshl_b32 {t0}, {t0}, 7
        s_add_u32 {t0}, {t0}, {WS_FLAG + 4*FLAG_STAGE}
        v_lshrrev_b32 {tv}, 1, {lane}
        v_mul_u32_u24 {tv}, 1280, {tv}
        v_and_b32 {tv2}, 1, {lane}
        v_lshl_add_u32 {tv}, {tv2}, 7, {tv}''')
        poll(tv, t0, (1 << 48) - 1)
        a(f'''
        v_mul_u32_u24 {tv}, 3277, {lane}
        v_lshrrev_b32 {tv}, 16, {tv}
        v_mul_u32_u24 {tv2}, {20480 - 320}, {tv}
        v_add_u32 {tv2}, {tv2}, {l16}
        s_lshl_b32 {t1}, {t1}, 2
        s_add_u32 {t1}, {t1}, {WS_YP + sel*61440}''')
        setexec((1 << 60) - 1)
        for p in range(8):
            a.lines.append(f'    buffer_load_dwordx4 {OF[p]}, {tv2}, {rWS}, {t1} offen sc1')
            a(f's_add_u32 {t1}, {t1}, 2560')
        a(f'''
        s_not_b32 {t0}, {kk}
        s_and_b32 {t1}, {kk}, 0x7fffffff
        s_cmp_lt_i32 {kk}, 0
        s_cselect_b32 {t0}, {t1}, {t0}
        s_and_b32 {t0}, {t0}, 0xffff0000
        v_mov_b32 {tv}, 0xbfb8aa3b
        v_mul_f32 {tv}, {t0}, {tv}
        v_exp_f32 {tv}, {tv}
        v_add_u32 {tv2}, {epl}, {l16}
        v_add_f32 {tv}, 1.0, {tv}
        v_rcp_f32 {tv}, {tv}
        s_waitcnt vmcnt(0)''')
        for p in range(1, 8):
            a(f'v_pk_add_f32 {OF[0][0:2]}, {OF[0][0:2]}, {OF[p][0:2]}\nv_pk_add_f32 {OF[0][2:4]}, {OF[0][2:4]}, {OF[p][2:4]}')
        for k in range(4): a(f'v_mul_f32 {OF[0][k]}, {OF[0][k]}, {tv}')
        a(f'ds_write_b128 {tv2}, {OF[0]}')
        setexec(FULL)
        a(f'''
        v_mul_u32_u24 {tv2}, 80, {grp}
        v_add_u32 {tv2}, {epl}, {tv2}
        s_and_b32 {t2}, {t2}, 15
        v_cmp_eq_u32 vcc, {t2}, {col}
        s_mov_b64 exec, vcc''')
        for ps in range(3):
            for t in range(5): a(f'ds_read_b128 {OF[5*ps + t]}, {tv2} offset:{320*ps + 16*t}')
        a('s_waitcnt lgkmcnt(0)')
        for ps in range(3):
            for t in range(5):
                for h in range(2):
                    d = OA.sub(4*t + 2*h, 2)
                    a(f'v_pk_add_f32 {d}, {d}, {OF[5*ps + t].sub(2*h, 2)}')
        setexec(FULL)
        a(f'{E}:')
    for k in range(10): a(f'v_cvt_pk_bf16_f32 {XR[k]}, {OA[2*k]}, {OA[2*k+1]}')
    for t in range(5): a(f'ds_write_b64 {ea}, {XR.sub(2*t, 2)} offset:{8*t}')
    a(f'v_add_u32 {tv}, {epl}, {l16}')
    for p in range(3): a(f'ds_read_b128 {OF[p]}, {tv} offset:{1024*p}')
    for p in range(3):
        a(f's_waitcnt lgkmcnt({2-p})')
        a(f'buffer_store_dwordx4 {OF[p]}, {wo[p]}, {rOUT}, {ob} offen offset:{p*1024}')
    if stamps:
        a('s_waitcnt vmcnt(0)')
        stamp('end')
        a(f'''
        s_lshl_b32 {t0}, s2, 2
        s_add_u32 {t0}, {t0}, {wv}
        s_lshl_b32 {t0}, {t0}, 8
        s_add_u32 {t0}, {t0}, {WS_STAMP}
        v_lshlrev_b32 {tv}, 2, {lane}
        buffer_store_dword {vstamp}, {tv}, {rWS}, {t0} offen''')
    a('L_end:\ns_endpgm')

    body = a.text()
    head = f'''; Fused LayerNorm + Hedgehog linear attention + routed SwiGLU, one persistent launch (generated by gen1.py)
; @launch grid=(256,1,1) block=(256,1,1) lds=163840
.amdgcn_target "amdgcn-amd-amdhsa--gfx950"
.text
.globl {KNAME}_kernel
.p2align 8
.type {KNAME}_kernel,@function
{KNAME}_kernel:
'''
    tail = f'''.section .rodata,"a"
.p2align 6
.amdhsa_kernel {KNAME}_kernel
  .amdhsa_next_free_vgpr 512
  .amdhsa_next_free_sgpr 102
  .amdhsa_accum_offset 256
  .amdhsa_group_segment_fixed_size 0
  .amdhsa_kernarg_size 96
  .amdhsa_user_sgpr_count 2
  .amdhsa_user_sgpr_kernarg_segment_ptr 1
  .amdhsa_system_sgpr_workgroup_id_x 1
  .amdhsa_float_denorm_mode_32 3
.end_amdhsa_kernel
'''
    sys.stderr.write(f'vgpr hi {V.hi} agpr hi {A.hi} sgpr hi {S.hi} padded {a.padded} lines {len(body.splitlines())}\n')
    return head + body + tail, stamp_names

if __name__ == '__main__':
    t, _ = gen(False); open('k1.s', 'w').write(t)
    t, n = gen(True); open('k1_st.s', 'w').write(t); open('k1_st.names', 'w').write('\n'.join(n))
```

```python
import re

class Pool:
    def __init__(self, prefix, n, start=0):
        self.p = prefix; self.used = [False]*n
        for i in range(start): self.used[i] = True
        self.hi = start
    def alloc(self, n=1, align=None):
        if align is None: align = 1 if n == 1 else (2 if n < 4 else 4)
        i = 0
        while i + n <= len(self.used):
            if i % align == 0 and not any(self.used[i:i+n]):
                for k in range(i, i+n): self.used[k] = True
                self.hi = max(self.hi, i+n)
                return Reg(self.p, i, n, self)
            i += 1
        raise RuntimeError(f'out of {self.p} registers (need {n})')
    def at(self, i, n=1):
        assert not any(self.used[i:i+n]), f'{self.p}{i} busy'
        for k in range(i, i+n): self.used[k] = True
        self.hi = max(self.hi, i+n)
        return Reg(self.p, i, n, self)

class Reg:
    def __init__(self, p, i, n, pool=None):
        self.p = p; self.i = i; self.n = n; self.pool = pool
    def __str__(self):
        return f'{self.p}{self.i}' if self.n == 1 else f'{self.p}[{self.i}:{self.i+self.n-1}]'
    __repr__ = __str__
    def __format__(self, spec): return str(self)
    def __getitem__(self, k):
        if isinstance(k, slice):
            a = k.start or 0; b = self.n if k.stop is None else k.stop
            assert 0 <= a < b <= self.n, (a, b, self.n)
            return Reg(self.p, self.i+a, b-a)
        assert 0 <= k < self.n, (k, self.n)
        return Reg(self.p, self.i+k, 1)
    def sub(self, a, n): return self[a:a+n]
    def free(self):
        for k in range(self.i, self.i+self.n):
            assert self.pool.used[k]
            self.pool.used[k] = False

def free(*rs):
    for r in rs:
        if isinstance(r, (list, tuple)): free(*r)
        else: r.free()

REG_RE = re.compile(r'^(-|\|)?(abs\()?([vas])(\d+|\[(\d+):(\d+)\])\)?\|?$')
def parse_reg(op):
    op = op.strip()
    if op in ('vcc', 'exec'): return [(op, 0), (op, 1)]
    if op in ('vcc_lo', 'exec_lo'): return [(op[:-3], 0)]
    if op in ('vcc_hi', 'exec_hi'): return [(op[:-3], 1)]
    if op == 'm0': return [('m0', 0)]
    m = REG_RE.match(op)
    if not m: return []
    p = m.group(3)
    if m.group(5) is not None: return [(p, k) for k in range(int(m.group(5)), int(m.group(6))+1)]
    return [(p, int(m.group(4)))]

TRANS = ('v_exp_f32', 'v_log_f32', 'v_rcp_f32', 'v_rsq_f32', 'v_sqrt_f32', 'v_sin_f32', 'v_cos_f32', 'v_rcp_iflag_f32')
class Ins:
    def __init__(self, text):
        self.text = text
        t = text.split(';')[0].strip()
        self.label = None; self.mn = None; self.directive = False
        self.w = set(); self.r = set(); self.ws = 1
        if not t: self.ws = 0; return
        if t.endswith(':'): self.label = t[:-1]; self.ws = 0; return
        if t.startswith('.'): self.directive = True; self.ws = 0; return
        parts = t.split(None, 1)
        mn = parts[0]; self.mn = mn
        rest = parts[1] if len(parts) > 1 else ''
        ops = []; cur = ''; d = 0
        for ch in rest:
            if ch in '[(': d += 1
            if ch in '])': d -= 1
            if ch == ',' and d == 0: ops.append(cur.strip()); cur = ''
            else: cur += ch
        if cur.strip(): ops.append(cur.strip())
        mods = ''
        if ops:
            sp = ops[-1].split(None, 1)
            if len(sp) > 1: ops[-1] = sp[0]; mods = sp[1]
        self.ops = ops; self.mods = mods
        R = [parse_reg(o) for o in ops]
        self.mfma = mn.startswith('v_mfma')
        self.valu = mn.startswith('v_') and not self.mfma
        self.trans = any(mn.startswith(x) for x in TRANS)
        self.dl = mn.startswith('v_dot')
        self.dpp = '_dpp' in mn
        self.perml = mn.startswith('v_permlane')
        self.rdlane = mn.startswith('v_readlane') or mn.startswith('v_readfirstlane') or mn.startswith('v_writelane')
        self.vmem = mn.startswith('buffer_') or mn.startswith('global_')
        self.ds = mn.startswith('ds_')
        self.salu = mn.startswith('s_')
        self.branch = mn.startswith('s_cbranch') or mn == 's_branch'
        self.target = ops[0] if self.branch else None
        self.lds_dma = self.vmem and (' lds' in ' ' + mods or '_lds_' in mn)
        self.store = False; self.store_data = set()
        self.srcA = set(); self.srcC = set(); self.passes = 0
        allr = lambda L: set(x for l in L for x in l)
        if mn == 's_nop': self.ws = int(ops[0], 0) + 1; return
        if self.mfma:
            self.w = set(R[0]); self.srcA = allr(R[1:3]); self.srcC = set(R[3]); self.r = self.srcA | self.srcC
            self.passes = 8 if '32x32' in mn else 4
            self.dlist = R[0]; self.clist = R[3]
        elif self.perml:
            self.w = allr(R); self.r = allr(R)
        elif self.valu:
            nd = 1
            if re.match(r'v_(add|sub|subrev|addc|subb|subbrev)_co', mn) or mn.startswith('v_div_scale') or mn.startswith('v_mad_u64'): nd = 2
            self.w = allr(R[:nd]); self.r = allr(R[nd:])
            if mn.startswith('v_cmpx'): self.w |= {('exec', 0), ('exec', 1)}
            if any(mn.startswith(x) for x in ('v_fmac', 'v_dot2c', 'v_pk_fmac', 'v_writelane')) or self.dpp: self.r |= set(R[0])
        elif self.vmem:
            if mn in ('buffer_wbl2', 'buffer_inv'): pass
            elif self.lds_dma: self.r = allr(R) | {('m0', 0)}
            elif 'load' in mn: self.w = set(R[0]); self.r = allr(R[1:])
            else:
                self.store = True; self.r = allr(R)
                d = R[0] if mn.startswith('buffer_') else R[1]
                if len(d) >= 3: self.store_data = set(d)
                if 'atomic' in mn and 'sc0' in mods: self.w = set(R[0])
        elif self.ds:
            if 'read' in mn or 'permute' in mn or 'swizzle' in mn or '_rtn' in mn: self.w = set(R[0]); self.r = allr(R[1:])
            else: self.r = allr(R)
        elif self.salu:
            if mn.startswith('s_cmp') or mn.startswith('s_bitcmp') or self.branch or mn in ('s_waitcnt', 's_barrier', 's_endpgm', 's_sleep', 's_setprio'):
                self.r = allr(R)
            else:
                self.w = set(R[0]) if R else set(); self.r = allr(R[1:])
                if 'saveexec' in mn: self.w |= {('exec', 0), ('exec', 1)}

def isv(s): return set(x for x in s if x[0] in 'va' and len(x[0]) == 1)
def iss(s): return set(x for x in s if x[0] in ('s', 'vcc'))
EXEC = {('exec', 0), ('exec', 1)}

def need(p, c):
    n = 0
    if p.mn is None or p.mn == 's_nop' or c.mn == 's_nop': return 0
    if p.valu:
        pw = isv(p.w); ps = iss(p.w)
        if c.mfma and pw & c.r: n = max(n, 3 if p.dl else 2)
        if (c.dpp or c.perml) and pw & c.r: n = max(n, 2)
        if c.rdlane and pw & c.r: n = max(n, 1)
        if p.trans and c.valu and pw & (c.r | c.w): n = max(n, 1)
        if p.trans and (c.vmem or c.ds) and pw & c.r: n = max(n, 1)
        if p.dl and (c.valu or c.vmem or c.ds) and pw & (c.r | c.w):
            if not (c.mn == p.mn and not (pw & (set(parse_reg(c.ops[1])) | set(parse_reg(c.ops[2]))))): n = max(n, 3)
        if ps:
            if c.vmem and ps & c.r: n = max(n, 5)
            if c.rdlane and ps & c.r: n = max(n, 4)
            elif c.valu and (ps & c.r): n = max(n, 2)
            if c.salu and not c.branch and ps & c.r: n = max(n, 1)
        if p.w & EXEC:
            if c.mfma or c.rdlane or c.perml: n = max(n, 4)
            if c.dpp: n = max(n, 5)
    if p.mfma:
        big = 8 if p.passes == 4 else 12
        if c.mfma:
            if p.w & c.srcA: n = max(n, big)
            if p.w & c.srcC:
                if not (c.clist == p.dlist and c.passes == p.passes): n = max(n, big - 2)
            elif p.w & c.w: n = max(n, big - 2)
        elif (c.valu or c.vmem or c.ds) and p.w & (c.r | c.w): n = max(n, big)
        if c.valu and p.srcC & isv(c.w): n = max(n, 3 if p.passes == 4 else 7)
    if p.store_data and p.store_data & isv(c.w): n = max(n, 2)
    if p.salu and ('m0', 0) in p.w and c.lds_dma: n = max(n, 1)
    return n

def pad_hazards(lines, verbose=False):
    ins = [Ins(l) for l in lines]
    total = 0
    i = 0
    def preds(k, ins, br):
        out = []
        if k > 0 and not (ins[k-1].mn in ('s_branch', 's_endpgm')): out.append(k-1)
        if ins[k].label: out += br.get(ins[k].label, [])
        return out
    def index():
        br = {}
        for k, x in enumerate(ins):
            if x.mn and x.branch: br.setdefault(x.target, []).append(k)
        return br
    br = index(); k = 0
    while k < len(ins):
        c = ins[k]
        if c.mn is None or c.mn == 's_nop': k += 1; continue
        worst = 0
        stack = [(q, 0) for q in preds(k, ins, br)]
        seen = {}
        while stack:
            q, d = stack.pop()
            if d >= 13 or seen.get(q, 99) <= d: continue
            seen[q] = d
            p = ins[q]
            if p.mn:
                n = need(p, c)
                if n - d > worst: worst = n - d; why = p.text
            for q2 in preds(q, ins, br): stack.append((q2, d + p.ws))
        if worst > 0:
            if verbose: print(f'pad {worst} @{k}: {why.strip()}  ->  {c.text.strip()}')
            ins.insert(k, Ins(f'    s_nop {worst-1}'))
            total += worst
            br = index(); k += 1
        k += 1
    return [x.text for x in ins], total

class Asm:
    def __init__(self):
        self.lines = []
        self.vm = 0
        self.V = Pool('v', 256, 1); self.A = Pool('a', 256); self.S = Pool('s', 100, 3)
        self.nlab = 0
    def __call__(self, text):
        last = None
        for l in text.split('\n'):
            t = l.strip()
            if not t: continue
            self.lines.append(t if t.endswith(':') else '    ' + t)
            if t.startswith('buffer_') or t.startswith('global_'):
                self.vm += 1; last = self.vm
        return last
    def waitvm(self, op, extra=''):
        n = self.vm - op
        assert 0 <= n, n
        if n > 63: n = 63
        self(f's_waitcnt vmcnt({n}) {extra}')
    def label(self, base):
        self.nlab += 1
        return f'L_{base}_{self.nlab}'
    def text(self, verbose=False):
        l, tot = pad_hazards(self.lines, verbose)
        self.padded = tot
        return '\n'.join(l) + '\n'


import subprocess, contextlib
class It:
    def __init__(self, text, counted=True):
        self.text = text
        t = text.strip()
        self.cls = None
        if counted:
            if t.startswith('buffer_') or t.startswith('global_'): self.cls = 'vm'
            elif t.startswith('ds_'): self.cls = 'lg'
class Wait:
    def __init__(self, vm=None, lg=None): self.vm = vm; self.lg = lg; self.cls = None
class Group:
    def __init__(self, items): self.items = items
class Brk:
    cls = None

def kind(x):
    if isinstance(x, Group):
        return ('S' if all(kind(i)[0] == 'S' for i in x.items) else 'G', sum(kind(i)[1] for i in x.items))
    if isinstance(x, Wait): return ('S', 1)
    if isinstance(x, Brk): return ('B', 0)
    t = x.text.strip(); mn = t.split()[0]
    if t.endswith(':'): return ('S', 0)
    if mn.startswith('v_mfma'): return ('M', 8 if '32x32' in mn else 4)
    if mn.startswith('s_nop'): return ('S', int(t.split()[1]) + 1)
    if mn.startswith('s_'): return ('S', 1)
    if mn.startswith('ds_write_b128'): return ('D', 6)
    if mn.startswith('ds_write'): return ('D', 4)
    if mn.startswith('ds_'): return ('D', 2)
    if mn.startswith('buffer_store') : return ('D', 6)
    if mn.startswith('buffer_') or mn.startswith('global_'): return ('D', 3)
    if any(mn.startswith(x) for x in TRANS) or mn.startswith('v_permlane'): return ('V', 2)
    assert not mn.startswith('v_pk_') and not mn.startswith('v_dot'), 'no packed ops beside MFMAs: ' + t
    return ('V', 1)

def weave(main, *fills, start=0):
    if isinstance(start, int): start = [start] * len(fills)
    out = []; n = 0; i = 0
    while i < len(main):
        x = main[i]; out.append(x); i += 1
        k, c = kind(x)
        if k != 'M': continue
        cap = c; p = 1; hadv = False
        while i < len(main) and kind(main[i])[0] != 'M':
            ky, cy = kind(main[i])
            if ky == 'V': p = max(p, 2); hadv = True
            p += cy; out.append(main[i]); i += 1
        placed = [False] * len(fills); stop = [n < st for st in start]
        progress = True
        while progress:
            progress = False
            order = list(range(len(fills)))
            if p == 1: order.sort(key=lambda z: {'D': 0, 'G': 0, 'S': 1}.get(kind(fills[z][0])[0], 2) if fills[z] else 3)
            for z in order:
                f = fills[z]
                while f and not stop[z] and kind(f[0])[0] == 'B':
                    f.pop(0)
                    if placed[z]: stop[z] = True
                if not f or stop[z]: continue
                ky, cy = kind(f[0])
                if ky == 'M':
                    out.append(f.pop(0)); p = 1; cap = cy; hadv = False; placed = [False] * len(fills)
                    stop = [n < st for st in start]; progress = True; break
                if ky in ('D', 'G'):
                    if not (p == 1 or (not hadv and p + cy <= cap)): continue
                    q = p
                else:
                    q = max(p, 2) if ky == 'V' else p
                    if q + cy > cap: continue
                    if ky == 'V': hadv = True
                out.append(f.pop(0)); p = q + cy; placed[z] = True; progress = True
                break
        n += 1
    return out

PROMOTE = re.compile(r'^v_(mov_b32|add_u32|sub_u32|subrev_u32|and_b32|or_b32|xor_b32|lshlrev_b32|lshrrev_b32|ashrrev_i32|add_f32|sub_f32|mul_f32|max_f32|min_f32|exp_f32|rcp_f32|sqrt_f32|mul_u32_u24|min_u32|max_u32|cndmask_b32|cmp_\w+|permlane16_swap_b32|permlane32_swap_b32)( |$)')
def sizes(lines):
    r = subprocess.run(['llvm-mc', '-triple=amdgcn-amd-amdhsa', '-mcpu=gfx950', '-show-encoding'],
                       input='\n'.join(lines) + '\n', capture_output=True, text=True)
    assert r.returncode == 0, r.stderr[:2000]
    enc = [l.split('encoding:')[1].count(',') + 1 for l in r.stdout.split('\n') if 'encoding:' in l]
    out = []; k = 0
    for l in lines:
        t = l.split(';')[0].strip()
        if not t or t.endswith(':') or t.startswith('.'): out.append(0)
        else: out.append(enc[k]); k += 1
    assert k == len(enc)
    return out
def align8(lines):
    sz = sizes(lines); off = 0; cand = None; n = 0; bad = 0
    for k, l in enumerate(lines):
        s = sz[k]
        if s == 0: continue
        if s == 4:
            if PROMOTE.match(l.strip()): cand = k
            off += 4
        else:
            if off % 8 == 4:
                if cand is not None:
                    t = lines[cand].strip().split(None, 1)
                    lines[cand] = f'    {t[0]}_e64 {t[1]}'; off += 4; n += 1
                else: bad += 1
            cand = None
            off += s
    return lines, n, bad, off

class Asm2:
    def __init__(self):
        self.stack = [[]]; self.cold = []
        self.V = Pool('v', 256, 1); self.A = Pool('a', 256); self.S = Pool('s', 102, 3)
        self.nlab = 0
    def __call__(self, text, counted=True):
        last = None
        for l in text.split('\n'):
            t = l.strip()
            if not t or t.startswith(';'): continue
            if t == 'BRK': self.stack[-1].append(Brk()); continue
            it = It(t if t.endswith(':') else '    ' + t, counted)
            if t.startswith('s_cselect') or t.startswith('s_addc') or t.startswith('s_cbranch_scc'):
                prev = self.stack[-1].pop()
                assert kind(prev)[0] == 'S' and not isinstance(prev, Wait), t
                self.stack[-1].append(Group((prev.items if isinstance(prev, Group) else [prev]) + [it]))
            else: self.stack[-1].append(it)
            if it.cls: last = it
        return last
    def wait(self, vm=None, lg=None): self.stack[-1].append(Wait(vm, lg))
    def put(self, items): self.stack[-1].extend(items)
    @contextlib.contextmanager
    def capture(self):
        L = []; self.stack.append(L)
        try: yield L
        finally: self.stack.pop()
    @contextlib.contextmanager
    def group(self):
        with self.capture() as L: yield
        self.stack[-1].append(Group(L))
    @contextlib.contextmanager
    def outofline(self):
        with self.capture() as L: yield
        for x in L: assert not isinstance(x, Wait) or (x.vm in (None, 0) and x.lg in (None, 0))
        self.cold.extend(L)
    def label(self, base):
        self.nlab += 1
        return f'L_{base}_{self.nlab}'
    def text(self, verbose=False, align=True):
        flat = []
        def fl(L):
            for x in L:
                if isinstance(x, Group): fl(x.items)
                elif not isinstance(x, Brk): flat.append(x)
        fl(self.stack[0]); fl(self.cold)
        cnt = {'vm': 0, 'lg': 0}; pos = {}; lines = []
        for x in flat:
            if isinstance(x, Wait):
                parts = []
                for c, h, nm, mx in (('vm', x.vm, 'vmcnt', 63), ('lg', x.lg, 'lgkmcnt', 15)):
                    if h is None: continue
                    n = 0 if isinstance(h, int) else cnt[c] - pos[id(h)]
                    if not isinstance(h, int): assert h.cls == c
                    parts.append(f'{nm}({min(n, mx)})')
                lines.append('    s_waitcnt ' + ' '.join(parts))
            else:
                lines.append(x.text)
                if x.cls: cnt[x.cls] += 1; pos[id(x)] = cnt[x.cls]
        lines, self.padded = pad_hazards(lines, verbose)
        self.promoted = self.misaligned = 0
        if align: lines, self.promoted, self.misaligned, self.bytes = align8(lines)
        return '\n'.join(lines) + '\n'
```

```python
import sys
from asmfw import *
KNAME = 'parallel_sum__linear_kernel_hedgehog__moe_arch_mod__prompt'

WS_FA = 0x10000; WS_FB = 0x18000; WS_FC = 0x20000; WS_FD = 0x28000
WS_CAND = 0x40000
WS_STAMP = 0x50000
WS_WKV = 0x100000; WS_WQ = 0x2A0000; WS_CS = 0x370000; WS_KVP = 0x390000
WS_O = 0x4A0000; WS_GP = 0x720000; WS_YP = 0x760000
WS_SIZE = 0x800000; DROP = 0x1000000
L_WKV = 0; L_WQ = 102400; L_CS = 153600; L_ST = 158720; L_KVS = 159744; L_ZERO = 163584; L_DUMMY = 163712
T_W = 0; T_PHI = 3072; T_ID = 5120; T_WR = 7168; T_ON = 9216; T_STRIDE = 12288
L_FFN = 0; L_TR = 24576; L_WO = 0; L_EP = L_WQ
LOG2E = 0x3fb8aa3b; ONES2 = 0x3f803f80
SPIN = 0x2000
M16 = 'v_mfma_f32_16x16x32_bf16'; M32 = 'v_mfma_f32_32x32x16_bf16'

def lanemask(f):
    m = 0
    for l in range(64):
        if f(l): m |= 1 << l
    return m

DEF = dict(R=4, poll_at=7, gather_at=78, cand_at=84, top_at=124, verbose=False, align=True, wo1=3, oload_after=8, npre=11)

def gen(stamps=False, probe=None, **kw):
    P = dict(DEF); P.update(kw)
    R = P['R']; L_XR = L_CS - R*16384
    a = Asm2(); V, A, S = a.V, a.A, a.S
    def smask(sp, m): a(f's_mov_b32 {sp[0]}, {m & 0xffffffff:#x}\ns_mov_b32 {sp[1]}, {m >> 32:#x}')
    def setexec(m):
        if m == (1 << 64) - 1: a('s_mov_b64 exec, -1')
        elif m < (1 << 31): a(f's_mov_b64 exec, {m:#x}')
        else: a(f's_mov_b32 exec_lo, {m & 0xffffffff:#x}\ns_mov_b32 exec_hi, {m >> 32:#x}')
    FULL = (1 << 64) - 1
    stamp_names = []
    def stamp(name):
        if probe:
            if name == probe: a(f's_memrealtime {sP1}\ns_waitcnt lgkmcnt(0)')
        if not stamps: return
        k = len(stamp_names); stamp_names.append(name)
        a(f's_memrealtime {sT64}\ns_waitcnt lgkmcnt(0)\nv_writelane_b32 {vstamp}, {sT64[0]}, {k}')

    rX, rW, rPHI, rWO, rWR, rG, rU, rD, rOUT, rWS = [S.alloc(4) for _ in range(10)]
    kA = S.alloc(16); kB = S.alloc(8)
    tag = S.alloc(2); sM = S.alloc(2)
    if stamps or probe: sT64 = S.alloc(2)
    if probe: sP1 = S.alloc(2)
    tb, hp, wv, rho, t0, t1, t2, t3 = [S.alloc() for _ in range(8)]
    u_hp, u_s, u_seg, u_flag, u_ok, tmp0 = [S.alloc() for _ in range(6)]
    lane, l16, col, grp, tv, tv2, tv3, tv4 = [V.alloc() for _ in range(8)]
    if stamps: vstamp = V.alloc()

    a(f'''
    s_cmp_ge_u32 s2, 256
    s_cbranch_scc1 L_end
    s_load_dwordx16 {kA}, s[0:1], 0
    s_load_dwordx8 {kB}, s[0:1], 64''')
    if stamps: a(f'v_mov_b32 {vstamp}, 0')
    stamp('start')
    wd = [V.alloc() for _ in range(3)]
    so0, so1 = S.alloc(), S.alloc()
    a(f'''
    v_lshrrev_b32 {tv}, 6, v0
    v_and_b32 {lane}, 63, v0
    v_readfirstlane_b32 {wv}, {tv}
    v_lshlrev_b32 {l16}, 4, {lane}
    s_and_b32 {t0}, s2, 7
    s_lshr_b32 {t1}, s2, 3
    s_min_u32 {t2}, {t1}, 29
    s_sub_u32 {t2}, {t2}, 20
    s_cselect_b32 {t2}, {t1}, {t2}
    s_cselect_b32 {t3}, 10, 5
    s_cselect_b32 {u_flag}, 0, 20
    s_lshr_b32 {u_s}, {t0}, 2
    s_mul_i32 {u_s}, {u_s}, {t3}
    s_lshr_b32 {t3}, {t2}, 1
    s_add_u32 {u_s}, {u_s}, {t3}
    s_add_u32 {u_flag}, {u_flag}, {u_s}
    s_and_b32 {t2}, {t2}, 1
    s_and_b32 {t3}, {t0}, 3
    s_lshl1_add_u32 {t2}, {t3}, {t2}
    s_lshl_b32 {t3}, {t2}, 5
    s_add_u32 {u_flag}, {u_flag}, {t3}
    s_lshr_b32 {t3}, {wv}, 1
    s_lshl1_add_u32 {u_hp}, {t2}, {t3}
    s_and_b32 {t3}, {wv}, 1
    s_lshl1_add_u32 {t2}, {u_s}, {t3}
    s_add_u32 {t3}, {t3}, 1
    s_cmp_lt_u32 {t1}, 20
    s_cselect_b32 {u_s}, {u_s}, {t2}
    s_cselect_b32 {u_seg}, {t3}, 0
    s_mul_i32 {so0}, {u_s}, {32*3840}
    s_mul_i32 {t2}, {u_seg}, 1280
    s_add_u32 {so0}, {so0}, {t2}
    s_mul_i32 {t2}, {u_hp}, 80
    s_add_u32 {so0}, {so0}, {t2}
    s_mul_i32 {so1}, {u_hp}, 1600
    s_mul_i32 {tmp0}, {wv}, {T_STRIDE}''')
    for i in range(3):
        if i: a(f'v_add_u32 {tv}, {64*i}, {lane}')
        a(f'''
        v_mul_u32_u24 {tv2}, 13108, {tv if i else lane}
        v_lshrrev_b32 {tv2}, 16, {tv2}
        v_mul_u32_u24 {tv2}, {3840 - 80}, {tv2}
        v_add_u32 {wd[i]}, {tv2}, {l16}''')
    smask(sM, 0xffffffff)
    a(f'v_mov_b32 {tv}, {DROP}\nv_cndmask_b32 {wd[2]}, {tv}, {wd[2]}, {sM}')
    for r, n in ((rW, 2457600), (rPHI, 25600), (rX, 2621440), (rWS, WS_SIZE)):
        a(f's_mov_b32 {r[2]}, {n}\ns_mov_b32 {r[3]}, 0x20000')
    xo = [V.alloc() for _ in range(4)]
    xbase, xrot, xlds = S.alloc(), S.alloc(), S.alloc()
    a(f'''
    s_lshr_b32 {tb}, {t0}, 1
    s_lshr_b32 {t2}, {t1}, 3
    s_lshl2_add_u32 {tb}, {tb}, {t2}
    s_and_b32 {hp}, {t0}, 1
    s_and_b32 {t3}, {t1}, 7
    s_lshl3_add_u32 {hp}, {hp}, {t3}
    s_mul_i32 {t2}, {t2}, 5
    s_lshr_b32 {t2}, {t2}, 1
    s_add_u32 {rho}, {t2}, {t3}
    s_sub_u32 {t2}, {rho}, 10
    s_cselect_b32 {rho}, {rho}, {t2}
    s_mov_b32 m0, {tmp0}
    s_waitcnt lgkmcnt(0)
    s_mov_b64 {rW[0:2]}, {kA[2:4]}
    s_mov_b64 {rPHI[0:2]}, {kA[4:6]}''')
    stamp('kernarg')
    for i in range(3): a(f'buffer_load_dwordx4 {wd[i]}, {rW}, {so0} offen offset:{i*1024} lds')
    a(f'''
    s_add_u32 m0, {tmp0}, {T_PHI}
    s_mov_b64 {rWS[0:2]}, {kB[6:8]}
    buffer_load_dwordx4 {l16}, {rPHI}, {so1} offen lds''')
    op_p0 = a(f'buffer_load_dwordx4 {l16}, {rPHI}, {so1} offen offset:1024 lds')
    a(f'''
    s_load_dwordx2 {tag}, {rWS[0:2]}, 0
    s_mov_b64 {rX[0:2]}, {kA[0:2]}
    v_lshrrev_b32 {tv}, 3, {lane}
    v_and_b32 {tv2}, 7, {lane}
    v_lshrrev_b32 {xo[0]}, 1, {tv}
    v_xor_b32 {tv2}, {tv2}, {xo[0]}
    v_mul_u32_u24 {tv}, 1280, {tv}
    v_lshl_add_u32 {xo[0]}, {tv2}, 4, {tv}
    v_xor_b32 {xo[1]}, 64, {xo[0]}
    v_add_u32 {xo[1]}, {8*1280 - 1024}, {xo[1]}
    v_add_u32 {xo[2]}, {16*1280 - 2048}, {xo[0]}
    v_add_u32 {xo[3]}, {16*1280 - 2048}, {xo[1]}
    s_lshl2_add_u32 {xbase}, {tb}, {wv}
    s_mul_i32 {xbase}, {xbase}, {32*1280}
    s_lshl_b32 {xrot}, {rho}, 7
    s_mul_i32 {xlds}, {wv}, {R*4096}
    s_add_u32 {xlds}, {xlds}, {L_XR}''')
    xop = {}
    def xdma(jj):
        a(f'''
        s_add_u32 m0, {xlds}, {(jj % R) * 4096}
        s_add_u32 {t0}, {xrot}, {xbase}
        s_add_u32 {xrot}, {xrot}, 128
        s_cmp_eq_u32 {xrot}, 1280
        s_cselect_b32 {xrot}, 0, {xrot}''')
        for p in range(4):
            xop[jj] = a(f'buffer_load_dwordx4 {xo[p]}, {rX}, {t0} offen offset:{p*1024} lds')
    xdma(0)
    for r, n, src in ((rWR, 1280, kA[10:12]), (rWO, 819200, kA[6:8]), (rG, 1966080, kA[12:14]), (rU, 1966080, kA[14:16]),
                      (rD, 1966080, kB[0:2]), (rOUT, 2621440, kB[2:4])):
        a(f's_mov_b64 {r[0:2]}, {src}\ns_mov_b32 {r[2]}, {n}\ns_mov_b32 {r[3]}, 0x20000')
    free(kA, kB, wd)
    a(f'''
    s_lshl_b32 {t1}, {rho}, 7
    v_add_u32 {tv}, {t1}, {l16}
    v_subrev_u32 {tv2}, 1280, {tv}
    v_min_u32 {tv3}, {tv}, {tv2}
    s_add_u32 m0, {tmp0}, {T_WR}
    v_add_u32 {tv}, 1024, {tv}
    buffer_load_dwordx4 {tv3}, {rWR}, 0 offen lds
    v_subrev_u32 {tv2}, 1280, {tv}
    v_min_u32 {tv}, {tv}, {tv2}
    s_add_u32 m0, {tmp0}, {T_WR + 1024}
    v_and_b32 {col}, 15, {lane}''')
    op_wr = a(f'buffer_load_dwordx4 {tv}, {rWR}, 0 offen lds')
    a(f'v_lshrrev_b32 {grp}, 4, {lane}')
    Z = V.alloc(4); ON = V.alloc(4)
    for k in range(4): a(f'v_mov_b32 {Z[k]}, 0\nv_mov_b32 {ON[k]}, {ONES2:#x}')
    a(f'''
    v_add_u32 {tv}, {tmp0}, {l16}
    ds_write_b128 {tv}, {Z} offset:{T_ID}
    v_subrev_u32 {tv2}, 20, {lane}
    v_min_u32 {tv2}, {tv2}, {lane}
    v_lshlrev_b32 {tv2}, 1, {tv2}
    v_mad_u32_u24 {tv2}, {lane}, 40, {tv2}
    ds_write_b128 {tv}, {Z} offset:{T_ID + 1024}
    v_add_u32 {tv2}, {tmp0}, {tv2}''')
    setexec((1 << 40) - 1)
    a(f'ds_write_b16 {tv2}, {ON[0]} offset:{T_ID}')
    setexec(FULL)
    b0, b1, bz, wa = V.alloc(), V.alloc(), V.alloc(), V.alloc(2)
    a(f'''
    s_cmp_eq_u32 {u_seg}, 2
    s_cselect_b32 {t1}, {T_ID - T_PHI}, 0
    s_add_u32 {t1}, {t1}, {tmp0}
    s_add_u32 {t1}, {t1}, {T_PHI}
    v_lshrrev_b32 {tv3}, 2, {col}
    v_and_b32 {tv4}, 3, {lane}
    v_lshl_add_u32 {tv2}, {grp}, 3, {tv3}
    v_lshlrev_b32 {b0}, 3, {tv4}
    v_mad_u32_u24 {b0}, {tv2}, 40, {b0}
    v_add_u32 {b0}, {t1}, {b0}
    v_min_u32 {tv2}, 1, {tv4}
    v_mul_u32_u24 {tv2}, 40, {tv2}
    v_sub_u32 {b1}, {b0}, {tv2}
    s_add_u32 {t0}, {tmp0}, {T_ID + 1600}
    v_mov_b32 {bz}, {t0}
    v_lshl_add_u32 {tv2}, {tv3}, 3, {tv4}
    v_mul_u32_u24 {tv2}, 80, {tv2}
    v_add_u32 {wa[1]}, {tmp0}, {tv2}
    v_lshl_add_u32 {wa[0]}, {grp}, 4, {wa[1]}''')
    frs = [(0, 0), (0, 1), (1, 1), (0, 2), (1, 2)]
    badr = {}
    for (u, t) in frs:
        for j in range(2):
            r_ = V.alloc(); badr[(u, t, j)] = r_
            def ok(l):
                d = 32*u + 8*(l >> 4) + 4*j + ((l & 15) >> 2); n0 = 16*t + 4*(l & 3)
                return d < 40 and n0 < 40 and ((d >= 20) == (n0 >= 20))
            smask(sM, lanemask(ok))
            off = (32*u + 4*j) * 40 + (0, 32, 24)[t]
            a(f'v_add_u32 {r_}, {off}, {b1 if t == 1 else b0}\nv_cndmask_b32 {r_}, {bz}, {r_}, {sM}')
    free(b0, b1, bz)
    po = [V.alloc() for _ in range(4)]
    vdrop = V.alloc()
    smask(sM, lanemask(lambda l: (l & 15) < 8))
    a(f'''
    v_mov_b32 {vdrop}, {DROP}
    v_lshlrev_b32 {tv2}, 4, {tv4}
    v_lshl_add_u32 {tv2}, {tv3}, 8, {tv2}
    v_lshl_add_u32 {po[0]}, {grp}, 6, {tv2}
    v_xor_b32 {po[2]}, 128, {po[0]}
    v_cndmask_b32 {po[2]}, {vdrop}, {po[2]}, {sM}
    v_min_u32 {tv2}, 1, {tv3}
    v_lshlrev_b32 {tv2}, 7, {tv2}
    v_xor_b32 {po[1]}, {tv2}, {po[0]}
    v_cmp_gt_u32 vcc, 40, {lane}
    v_lshlrev_b32 {tv2}, 1, {lane}
    s_cmp_lt_u32 s2, 240
    s_cselect_b32 {u_ok}, 0, {DROP}
    v_cndmask_b32 {po[3]}, {vdrop}, {tv2}, vcc
    s_mul_i32 {so0}, {u_hp}, 20
    s_add_u32 {so0}, {so0}, {u_s}
    s_lshl_b32 {so1}, {so0}, 8
    s_mul_i32 {t0}, {so0}, 2560
    s_add_u32 {t0}, {t0}, {WS_WQ}
    s_mul_i32 {so0}, {so0}, 5120
    s_mul_i32 {t1}, {u_seg}, 2560
    s_add_u32 {so0}, {so0}, {t1}
    s_add_u32 {so0}, {so0}, {WS_WKV - 2560}
    s_mul_i32 {t1}, {u_seg}, 80
    s_sub_u32 {t1}, {t1}, 80
    s_cselect_b32 {so0}, {t0}, {so0}
    s_cselect_b32 {t1}, 160, {t1}
    s_add_u32 {so1}, {so1}, {t1}
    s_add_u32 {so1}, {so1}, {WS_CS}
    s_add_u32 {so0}, {so0}, {u_ok}
    s_add_u32 {so1}, {so1}, {u_ok}''')
    free(u_hp, u_s, u_seg)
    xdma(1)
    fnb, fkb, s_kvp, s_o0, s_o1, s_gp, s_yp0, s_yp1 = [S.alloc() for _ in range(8)]
    o_off, o_off2, yp_off, gp_off = [V.alloc() for _ in range(4)]
    PO = V.alloc(4)
    for k in range(4): a(f'v_mov_b32 {PO[k]}, -1')
    smask(sM, 0xffffffff)
    a(f'''
    s_min_u32 {t2}, s2, 239
    s_mul_i32 {fnb}, {t2}, 6554
    s_lshr_b32 {fnb}, {fnb}, 16
    s_mul_i32 {t3}, {fnb}, 10
    s_sub_u32 {fkb}, {t2}, {t3}
    s_lshl2_add_u32 {t2}, {t2}, {wv}
    s_lshl_b32 {s_gp}, {t2}, 8
    s_add_u32 {s_gp}, {s_gp}, {WS_GP}
    s_add_u32 {s_gp}, {s_gp}, {u_ok}
    s_lshl_b32 {s_yp0}, {t2}, 6
    s_add_u32 {s_yp0}, {s_yp0}, {WS_YP}
    s_add_u32 {s_yp0}, {s_yp0}, {u_ok}
    s_add_u32 {s_yp1}, {s_yp0}, 61440
    s_lshl4_add_u32 {s_kvp}, {hp}, {tb}
    s_lshl_b32 {s_kvp}, {s_kvp}, 12
    s_add_u32 {s_kvp}, {s_kvp}, {WS_KVP}
    s_mul_i32 {s_o0}, {tb}, 163840
    s_mul_i32 {t0}, {wv}, 40960
    s_add_u32 {s_o0}, {s_o0}, {t0}
    s_add_u32 {s_o0}, {s_o0}, {WS_O}
    s_lshl_b32 {t1}, {hp}, 8
    s_add_u32 {s_o1}, {s_o0}, {t1}
    s_add_u32 {s_o1}, {s_o1}, 16384
    s_lshl2_add_u32 {s_o0}, {t1}, {s_o0}
    v_lshlrev_b32 {tv}, 4, v0
    buffer_store_dwordx4 {PO}, {tv}, {rWS}, {s_kvp} offen sc1
    v_and_b32 {tv}, 1, {grp}
    v_mul_u32_u24 {tv}, 20480, {tv}
    v_lshl_add_u32 {tv}, {col}, 4, {tv}
    v_lshrrev_b32 {tv2}, 5, {lane}
    v_lshl_add_u32 {o_off}, {tv2}, 9, {tv}
    v_cndmask_b32 {o_off2}, {vdrop}, {o_off}, {sM}
    buffer_store_dwordx4 {PO}, {o_off}, {rWS}, {s_o0} offen sc1
    v_cmp_gt_u32 vcc, 16, {lane}
    v_lshlrev_b32 {tv}, 2, {lane}
    v_lshlrev_b32 {tv2}, 4, {col}
    v_cndmask_b32 {yp_off}, {vdrop}, {tv}, vcc
    buffer_store_dwordx4 {PO}, {o_off}, {rWS}, {s_o0} offen offset:256 sc1
    v_cmp_gt_u32 vcc, 4, {col}
    v_lshl_add_u32 {tv2}, {grp}, 6, {tv2}
    buffer_store_dwordx4 {PO}, {o_off2}, {rWS}, {s_o1} offen sc1
    v_cndmask_b32 {gp_off}, {vdrop}, {tv2}, vcc
    buffer_store_dword {PO[0]}, {yp_off}, {rWS}, {s_yp0} offen sc1
    buffer_store_dword {PO[0]}, {yp_off}, {rWS}, {s_yp1} offen sc1
    buffer_store_dwordx4 {PO}, {gp_off}, {rWS}, {s_gp} offen sc1''')
    owa = V.alloc(); xr = [V.alloc(), V.alloc()]; fl_st = V.alloc(); fl_ld = V.alloc(); s_fl = S.alloc()
    a(f'''
    v_add_u32 {tv}, {tmp0}, {l16}
    ds_write_b128 {tv}, {ON} offset:{T_ON}
    v_and_b32 {tv2}, 1, {lane}
    v_xor_b32 {tv2}, 1, {tv2}
    v_lshlrev_b32 {tv2}, 11, {tv2}
    v_lshl_add_u32 {tv2}, {grp}, 4, {tv2}
    v_add_u32 {owa}, {tmp0}, {tv2}
    ds_write_b128 {tv}, {ON} offset:{T_ON + 1024}
    v_lshrrev_b32 {tv2}, 1, {col}
    v_xor_b32 {tv2}, {tv2}, {grp}
    v_lshlrev_b32 {tv2}, 4, {tv2}
    v_lshl_add_u32 {tv2}, {col}, 7, {tv2}
    v_add_u32 {xr[0]}, {xlds}, {tv2}
    v_xor_b32 {tv2}, 64, {tv2}
    v_add_u32 {xr[1]}, {xlds}, {tv2}
    v_and_b32 {tv}, 31, {lane}
    v_lshlrev_b32 {tv}, 2, {tv}
    v_add_u32 {tv}, {L_ZERO}, {tv}
    ds_write_b32 {tv}, {Z[0]}
    v_mov_b32 {fl_st}, {DROP}
    s_lshl_b32 {t0}, {u_flag}, 7
    s_add_u32 {t0}, {t0}, {WS_FA}
    s_add_u32 {t0}, {t0}, {u_ok}
    v_writelane_b32 {fl_st}, {t0}, 0
    s_lshl4_add_u32 {t0}, {hp}, {tb}
    s_lshl_b32 {t0}, {t0}, 7
    s_add_u32 {t0}, {t0}, {WS_FB}
    v_writelane_b32 {fl_st}, {t0}, 1
    s_lshl4_add_u32 {t0}, {tb}, {hp}
    s_lshl_b32 {t0}, {t0}, 7
    s_add_u32 {t0}, {t0}, {WS_FC}
    v_writelane_b32 {fl_st}, {t0}, 2
    s_lshl4_add_u32 {t0}, {fnb}, {fkb}
    s_lshl_b32 {t0}, {t0}, 7
    s_add_u32 {t0}, {t0}, {WS_FD}
    s_add_u32 {t0}, {t0}, {u_ok}
    v_writelane_b32 {fl_st}, {t0}, 3
    s_and_b32 {t0}, {hp}, 14
    s_cmp_eq_u32 {wv}, 1
    s_cselect_b32 {t0}, {hp}, {t0}
    s_cselect_b32 {t1}, 15, 29
    s_cmp_eq_u32 {wv}, 2
    s_cselect_b32 {t0}, {tb}, {t0}
    s_cselect_b32 {t1}, 15, {t1}
    s_cmp_eq_u32 {wv}, 3
    s_cselect_b32 {t0}, {fnb}, {t0}
    s_cselect_b32 {t1}, 9, {t1}
    s_lshl4_add_u32 {t0}, {wv}, {t0}
    s_lshl_b32 {s_fl}, {t0}, 11
    s_add_u32 {s_fl}, {s_fl}, {WS_FA}
    v_min_u32 {fl_ld}, {t1}, {lane}
    v_lshlrev_b32 {fl_ld}, 7, {fl_ld}''')
    free(Z, PO, u_flag)
    stamp('shadow')
    a.wait(vm=op_p0, lg=0)
    stamp('p0_loaded')
    WA = [V.alloc(4) for _ in range(4)]
    BF = {fr: V.alloc(4) for fr in frs}
    lop = {}
    for ra in range(2): a(f'ds_read_b128 {WA[2*ra]}, {wa[0]} offset:{T_W + ra*320}')
    for (u, t) in frs:
        if (u, t) == (1, 1):
            for ra in range(2): a(f'ds_read_b128 {WA[2*ra+1]}, {wa[1]} offset:{T_W + ra*320 + 64}')
        for j in range(2):
            lop[(u, t)] = a(f'ds_read_b64_tr_b16 {BF[(u,t)][2*j:2*j+2]}, {badr[(u,t,j)]}')
    PD = [[V.alloc(4) for t in range(3)] for ra in range(2)]
    vtag = V.alloc(2)
    with a.capture() as main:
        for (u, t) in frs:
            a.wait(lg=lop[(u, t)])
            for ra in range(2):
                a(f'{M16} {PD[ra][t]}, {WA[ra*2+u]}, {BF[(u,t)]}, {PD[ra][t] if u else 0}')
    with a.capture() as fill:
        xdma(2)
        a(f'''
        s_add_u32 {tag[0]}, {tag[0]}, 0x7f4a7c15
        s_addc_u32 {tag[1]}, {tag[1]}, 0x9e3779b9
        v_mov_b32 {vtag[0]}, {tag[0]}
        v_mov_b32 {vtag[1]}, {tag[1]}''')
    a.put(weave(main, fill)); a.put(fill)
    PF = [V.alloc(4) for t in range(3)]
    for t in range(3):
        for ra in range(2):
            a(f'v_cvt_pk_bf16_f32 {PF[t][2*ra]}, {PD[ra][t][0]}, {PD[ra][t][1]}')
            a(f'v_cvt_pk_bf16_f32 {PF[t][2*ra+1]}, {PD[ra][t][2]}, {PD[ra][t][3]}')
        a(f'buffer_store_dwordx4 {PF[t]}, {po[t]}, {rWS}, {so0} offen offset:{t*1024} sc1')
        a(f'{M16} {WA[t]}, {ON}, {PF[t]}, 0')
    xdma(3)
    smask(sM, lanemask(lambda l: (l >> 4) == 1))
    a(f'v_cndmask_b32 {tv}, {WA[0][0]}, {WA[1][0]}, {sM}')
    smask(sM, lanemask(lambda l: (l >> 4) == 2))
    a(f'''
    v_cndmask_b32 {tv}, {tv}, {WA[2][0]}, {sM}
    v_cvt_pk_bf16_f32 {tv}, {tv}, {tv}''')
    op_p0st = a(f'buffer_store_short {tv}, {po[3]}, {rWS}, {so1} offen sc1')
    for jj in range(4, R): xdma(jj)
    free(list(BF.values()), PD, PF, WA, wa, po, list(badr.values()), so0, so1, rW, rPHI, rWR)
    stamp('p0_stored')

    ka = [V.alloc(), V.alloc()]; qa = [V.alloc(), V.alloc()]; ck = [V.alloc(), V.alloc()]; cq = [V.alloc() for _ in range(4)]
    l16b, ta, kvp_off, ksa, ga_off, fo, fo2, fga, fda, gp_ld, ea = [V.alloc() for _ in range(11)]
    tra = [V.alloc() for _ in range(4)]; na = [V.alloc(), V.alloc()]; wo = [V.alloc() for _ in range(5)]; pa = [V.alloc() for _ in range(4)]
    SEL = A.alloc(4)
    s_kvp1, w5, wob, otf, ob, epl, f0, f1 = [S.alloc() for _ in range(8)]
    with a.capture() as addr:
        a(f'''
        v_add_u32 {l16b}, 4096, {l16}
        v_lshrrev_b32 {tv}, 3, {col}
        v_lshl_add_u32 {tv2}, {tv}, 1, {grp}
        v_and_b32 {tv2}, 3, {tv2}
        v_lshlrev_b32 {tv2}, 6, {tv2}
        v_mul_u32_u24 {tv}, 1280, {tv}
        v_lshl_add_u32 {tv2}, {tv4}, 4, {tv2}
        v_add_u32 {tv2}, {tv2}, {tv}
        v_bfe_u32 {tv}, {lane}, 2, 1
        v_mul_u32_u24 {ka[0]}, 2560, {tv}
        v_add_u32 {ka[0]}, {ka[0]}, {tv2}
        v_add_u32 {ka[1]}, 51200, {ka[0]}
        v_add_u32 {tv2}, {L_WQ}, {tv2}
        v_mul_u32_u24 {qa[0]}, 768, {tv}
        v_add_u32 {qa[0]}, {qa[0]}, {tv2}
        v_lshlrev_b32 {tv}, 8, {tv}
        v_sub_u32 {qa[1]}, {qa[0]}, {tv}
        v_lshl_add_u32 {tv}, {grp}, 3, {tv3}
        v_min_u32 {cq[2]}, 19, {tv}
        v_add_u32 {tv}, 4, {tv}
        v_min_u32 {cq[3]}, 19, {tv}
        v_lshrrev_b32 {tv}, 1, {tv4}
        v_mul_u32_u24 {tv}, 40, {tv}
        v_add_u32 {tv}, {L_CS}, {tv}
        v_lshl_add_u32 {cq[2]}, {cq[2]}, 8, {tv}
        v_lshl_add_u32 {cq[3]}, {cq[3]}, 8, {tv}
        v_and_b32 {tv}, 1, {lane}
        v_mul_u32_u24 {tv2}, 80, {tv}
        v_add_u32 {ck[0]}, {tv2}, {cq[2]}
        v_add_u32 {ck[1]}, {tv2}, {cq[3]}
        v_mad_u32_u24 {cq[0]}, {tv}, 24, {cq[2]}
        v_mad_u32_u24 {cq[1]}, {tv}, 24, {cq[3]}
        v_lshl_add_u32 {cq[2]}, {tv}, 4, {cq[2]}
        v_lshl_add_u32 {cq[3]}, {tv}, 4, {cq[3]}
        s_lshl_b32 {f0}, {wv}, 12
        s_add_u32 {epl}, {f0}, {L_EP}
        s_add_u32 {f0}, {f0}, {L_TR}
        v_and_b32 {tv}, 31, {lane}
        v_lshl_add_u32 {ta}, {tv}, 7, {f0}
        v_and_b32 {tv}, 7, {lane}
        v_lshl_add_u32 {ta}, {tv}, 4, {ta}
        v_lshrrev_b32 {tv}, 5, {lane}
        v_lshl_add_u32 {ta}, {tv}, 14, {ta}
        v_lshl_add_u32 {tv}, {grp}, 2, {tv3}
        v_bfe_u32 {tv2}, {lane}, 1, 1
        v_and_b32 {tra[0]}, 7, {tv}
        v_xor_b32 {tv2}, {tv2}, {tra[0]}
        v_lshlrev_b32 {tv2}, 4, {tv2}
        v_lshl_add_u32 {tv2}, {tv}, 7, {tv2}
        v_and_b32 {tv}, 1, {lane}
        v_lshl_add_u32 {tv2}, {tv}, 3, {tv2}
        s_lshr_b32 {f0}, {wv}, 1
        s_mul_i32 {f1}, {f0}, 1920
        s_add_u32 {s_kvp}, {s_kvp}, {f1}
        s_lshl_b32 {f0}, {f0}, 14
        s_add_u32 {f0}, {f0}, {L_TR}
        v_add_u32 {tv2}, {f0}, {tv2}
        s_and_b32 {f0}, {tb}, 1
        s_lshl_b32 {f1}, {f0}, 5
        v_xor_b32 {tra[0]}, {f1}, {tv2}
        v_xor_b32 {tra[1]}, 32, {tra[0]}
        s_lshl3_add_u32 {f0}, {f0}, 64
        v_xor_b32 {tra[2]}, {f0}, {tv2}
        s_and_b32 {f0}, {wv}, 1
        s_lshl_b32 {f1}, {f0}, 5
        s_add_u32 {f1}, {f1}, 64
        v_xor_b32 {tra[3]}, {f1}, {tv2}
        s_mul_i32 {f1}, {f0}, 768
        s_add_u32 {s_kvp}, {s_kvp}, {f1}
        s_sub_u32 {s_kvp}, {s_kvp}, 128
        s_add_u32 {f1}, {f0}, 7
        v_lshlrev_b32 {tv}, {f1}, {grp}
        v_lshl_add_u32 {tv}, {col}, 4, {tv}
        s_lshl_b32 {f1}, 4, {f1}
        s_add_u32 {s_kvp1}, {s_kvp}, {f1}
        s_lshl_b32 {f0}, {f0}, 3
        v_add_u32 {tv2}, {f0}, {col}
        v_cmp_le_u32 vcc, 8, {tv2}
        s_mul_i32 {w5}, {wv}, 5120
        s_lshl_b32 {f0}, {hp}, 16
        v_cndmask_b32 {kvp_off}, {vdrop}, {tv}, vcc
        s_add_u32 {f0}, {f0}, {WS_KVP}
        v_min_u32 {tv}, 239, v0
        v_lshl_add_u32 {ga_off}, {tv}, 4, {f0}
        v_subrev_u32 {tv2}, 120, {tv}
        v_min_u32 {tv2}, {tv2}, {tv}
        v_sub_u32 {ksa}, {tv}, {tv2}
        v_lshlrev_b32 {ksa}, 4, {ksa}
        v_cmp_le_u32 vcc, 40, {tv2}
        v_lshrrev_b32 {na[0]}, 3, {tv2}
        v_and_b32 {na[1]}, 7, {tv2}
        v_subrev_u32 {tv2}, 40, {tv2}
        v_lshrrev_b32 {tv}, 4, {tv2}
        v_cndmask_b32 {na[0]}, {na[0]}, {tv}, vcc
        v_and_b32 {tv2}, 15, {tv2}
        v_add_u32 {tv2}, 8, {tv2}
        v_cndmask_b32 {na[1]}, {na[1]}, {tv2}, vcc
        v_lshl_add_u32 {ksa}, {na[0]}, 4, {ksa}
        v_mul_u32_u24 {na[1]}, 80, {na[1]}
        v_add_u32 {ksa}, {ksa}, {na[1]}
        v_add_u32 {ksa}, {L_KVS}, {ksa}
        v_bfe_u32 {tv}, {lane}, 3, 2
        v_lshl_add_u32 {tv}, {tv}, 2, {tv4}
        v_mul_u32_u24 {tv}, 80, {tv}
        v_lshrrev_b32 {tv2}, 5, {lane}
        v_mul_u32_u24 {tv2}, 1920, {tv2}
        v_add_u32 {tv}, {tv}, {tv2}
        v_add_u32 {na[0]}, {L_KVS}, {tv}
        v_bfe_u32 {tv}, {lane}, 4, 1
        v_mul_u32_u24 {tv}, 640, {tv}
        v_sub_u32 {tv2}, {na[0]}, {tv}
        v_add_u32 {na[1]}, 1280, {tv2}
        v_mov_b32 {tv}, {L_ZERO}''')
        smask(sM, lanemask(lambda l: ((l >> 2) & 1) == (l >> 5)))
        a(f'v_cndmask_b32 {na[0]}, {tv}, {na[0]}, {sM}\nv_cndmask_b32 {na[1]}, {tv}, {na[1]}, {sM}')
        a(f'''
        v_and_b32 {tv}, 1, {lane}
        v_lshlrev_b32 {tv}, 4, {tv}
        v_mov_b32 {tv2}, 0x3f80
        v_lshlrev_b32 {tv}, {tv}, {tv2}''')
        for h in range(2):
            smask(sM, lanemask(lambda l: ((l & 15) >> 2) == (l >> 4) and ((l >> 1) & 1) == h))
            a(f'v_cndmask_b32 {tv2}, 0, {tv}, {sM}\nv_accvgpr_write_b32 {SEL[h]}, {tv2}\nv_accvgpr_write_b32 {SEL[2+h]}, {tv2}')
        a(f'''
        v_lshrrev_b32 {tv}, 3, {lane}
        v_and_b32 {tv2}, 7, {lane}
        v_lshlrev_b32 {tv2}, 4, {tv2}
        v_mul_u32_u24 {fo}, 3072, {tv}
        v_add_u32 {fo}, {fo}, {tv2}
        v_mul_u32_u24 {fo2}, 1280, {tv}
        v_add_u32 {fo2}, {fo2}, {tv2}
        v_lshlrev_b32 {tv2}, 3, {tv4}
        v_lshl_add_u32 {tv2}, {tv3}, 7, {tv2}
        s_lshl_b32 {f0}, {wv}, 5
        v_add_u32 {tv2}, {f0}, {tv2}
        v_lshl_add_u32 {fga}, {grp}, 10, {tv2}
        v_lshl_add_u32 {fda}, {grp}, 9, {tv2}
        s_mul_i32 {f0}, {fnb}, 10240
        s_add_u32 {f0}, {f0}, {WS_GP}
        v_lshl_add_u32 {tv}, {tv4}, 4, {f0}
        v_lshl_add_u32 {tv}, {grp}, 6, {tv}
        v_lshl_add_u32 {gp_ld}, {tv3}, 8, {tv}''')
        for i in range(5):
            if i: a(f'v_add_u32 {tv}, {i*64}, {lane}')
            a(f'''
            v_mul_u32_u24 {tv2}, 6554, {tv if i else lane}
            v_lshrrev_b32 {tv2}, 16, {tv2}
            v_mul_u32_u24 {tv2}, {1280 - 160}, {tv2}
            v_add_u32 {wo[i]}, {tv2}, {l16b if i == 4 else l16}''')
        a(f'''
        s_and_b32 {f0}, {hp}, 7
        s_mul_i32 {f0}, {f0}, 160
        s_mul_i32 {wob}, {wv}, {32*1280}
        s_add_u32 {wob}, {wob}, {f0}
        s_lshr_b32 {otf}, {hp}, 3
        s_lshl2_add_u32 {otf}, {otf}, {wv}
        s_lshl3_add_u32 {otf}, {tb}, {otf}
        s_mul_i32 {ob}, {otf}, {16*1280}
        s_add_u32 {ob}, {ob}, {f0}
        v_mul_u32_u24 {ea}, 160, {col}
        v_mad_u32_u24 {ea}, {grp}, 40, {ea}
        v_add_u32 {ea}, {epl}, {ea}
        v_mul_u32_u24 {tv}, 160, {tv3}
        v_mad_u32_u24 {tv}, {tv4}, 40, {tv}
        v_lshrrev_b32 {tv2}, 1, {grp}
        v_mul_u32_u24 {tv2}, 3200, {tv2}
        v_and_b32 {pa[1]}, 1, {grp}
        v_mul_u32_u24 {pa[1]}, 640, {pa[1]}
        v_add3_u32 {pa[0]}, {tv}, {tv2}, {pa[1]}
        v_add_u32 {pa[1]}, 51200, {pa[0]}
        v_mul_u32_u24 {tv2}, 6400, {grp}
        v_add_u32 {tv}, 2560, {tv}
        v_add_u32 {pa[2]}, {tv}, {tv2}
        v_add_u32 {pa[3]}, 51200, {pa[2]}''')

    X = [[A.alloc(4) for f in range(2)] for s in range(20)]
    OW = [V.alloc(4) for s in range(4)]
    SWacc = V.alloc(4); G = [V.alloc(4), V.alloc(4)]; SS = [V.alloc(4), V.alloc(4)]
    PL = V.alloc(2)
    def stat_mfmas(jj):
        with a.capture() as main:
            for p in range(2):
                s = 2*jj + p; ow = OW[s % 4]
                for f in range(2):
                    a(f'{M16} {G[f]}, {X[s][f]}, {X[s][f]}, {G[f] if s else 0}')
                    a(f'{M16} {SS[f]}, {ow}, {X[s][f]}, {SS[f] if s else 0}')
                a(f'{M16} {SWacc}, {ow}, {ON}, {SWacc if s else 0}')
        a.put(weave(main, addr))
    for jj in range(10):
        if jj == 4:
            a.wait(vm=op_p0st)
            a(f'''
            s_barrier
            s_cmp_eq_u32 {wv}, 0
            s_cselect_b32 {t0}, 0, {DROP}
            buffer_store_dwordx2 {vtag}, {fl_st}, {rWS}, {t0} offen sc1''')
            stamp('flag0')
        if jj == P['poll_at']: op_poll = a(f'buffer_load_dwordx2 {PL}, {fl_ld}, {rWS}, {s_fl} offen sc1')
        a.wait(vm=op_wr if jj == 0 else xop[jj])
        for f in range(2):
            for p in range(2):
                a(f'ds_read_b128 {X[2*jj+p][f]}, {xr[p]} offset:{(jj % R)*4096 + f*2048}')
        for p in range(2): lo = a(f'ds_read_b128 {OW[(2*jj+p) % 4]}, {owa} offset:{T_WR + (2*jj+p)*64}')
        if jj: stat_mfmas(jj - 1)
        a.wait(lg=lo)
        if jj + R < 10: xdma(jj + R)
    stamp('x_done')
    L = a.label('f0spin'); E = a.label('f0ok')
    a.wait(vm=op_poll)
    a(f'v_cmp_ne_u64 vcc, {tag}, {PL}\ns_cbranch_vccnz {L}\n{E}:')
    with a.outofline():
        L2 = a.label('f0loop')
        a(f'''
        {L}:
        s_mov_b32 {t3}, 0
        {L2}:
        buffer_load_dwordx2 {PL}, {fl_ld}, {rWS}, {s_fl} offen sc1
        s_add_u32 {t3}, {t3}, 1
        s_waitcnt vmcnt(0)
        v_cmp_ne_u64 vcc, {tag}, {PL}
        s_cbranch_vccz {E}
        s_cmp_lt_u32 {t3}, {SPIN}
        s_cbranch_scc1 {L2}
        s_branch {E}''')
    a('s_barrier')
    stamp('hop0')
    wsl = S.alloc(); wb = S.alloc()
    a(f'''
    s_lshl1_add_u32 {wsl}, {rho}, {wv}
    s_mul_i32 {wsl}, {wsl}, 5120
    s_mul_i32 {wb}, {hp}, 102400
    s_add_u32 {wb}, {wb}, {WS_WKV}''')
    def dma5(soff, ldsreg, ldsimm, n=5):
        a(f's_add_u32 m0, {ldsreg}, {ldsimm}')
        for p in range(min(n, 4)): op = a(f'buffer_load_dwordx4 {l16}, {rWS}, {soff} offen offset:{p*1024} sc1 lds')
        if n == 5:
            a(f's_add_u32 m0, {ldsreg}, {ldsimm + 4096}')
            op = a(f'buffer_load_dwordx4 {l16b}, {rWS}, {soff} offen sc1 lds')
        return op
    wop = {}
    def wkv_dma(c):
        a(f'''
        s_sub_u32 {t0}, {wsl}, 102400
        s_cselect_b32 {wsl}, {wsl}, {t0}
        s_add_u32 {t0}, {wsl}, {wb}
        s_add_u32 {wsl}, {wsl}, 20480''')
        wop[c] = dma5(t0, w5, L_WKV + c*20480)
    def wq_dma(i):
        if i < 2: a(f's_add_u32 {t2}, {wv}, {4*i}')
        else: a(f's_lshr_b32 {t2}, {wv}, 1\ns_add_u32 {t2}, {t2}, 8')
        a(f'''
        s_add_u32 {t0}, {t2}, {rho}
        s_sub_u32 {t1}, {t0}, 10
        s_cselect_b32 {t0}, {t0}, {t1}
        s_mul_i32 {t1}, {hp}, 10
        s_add_u32 {t0}, {t0}, {t1}
        s_mul_i32 {t0}, {t0}, 5120
        s_add_u32 {t0}, {t0}, {WS_WQ}''')
        if i < 2: return dma5(t0, w5, L_WQ + i*20480)
        a(f'''
        s_mul_i32 {t2}, {t2}, 5120
        s_and_b32 {t1}, {wv}, 1
        s_lshl_b32 {t1}, {t1}, 11
        s_add_u32 {t0}, {t0}, {t1}
        s_add_u32 {t2}, {t2}, {t1}''')
        return dma5(t0, t2, L_WQ, 3)
    def cs_dma():
        a(f'''
        s_mul_i32 {t0}, {hp}, 5120
        s_add_u32 {t0}, {t0}, {WS_CS}
        s_mov_b32 m0, {L_CS + 4096}
        s_lshl_b32 {t1}, {wv}, 10
        buffer_load_dwordx4 {l16b}, {rWS}, {t0} offen sc1 lds
        s_add_u32 {t0}, {t0}, {t1}
        s_add_u32 m0, {t1}, {L_CS}''')
        return a(f'buffer_load_dwordx4 {l16}, {rWS}, {t0} offen sc1 lds')
    wkv_dma(0); wkv_dma(1)
    stat_mfmas(9)
    if P['verbose']: print('addr leftover', len(addr))
    a.put(addr)
    free(OW, owa, xr, xo, xbase, xrot, xlds, fl_st, fl_ld, s_fl, PL, tmp0)
    NM = [V.alloc(4), V.alloc(4)]
    CC = V.alloc(2)
    mean, ssq, raw, mb, key = [V.alloc() for _ in range(5)]
    sInv = f0
    a(f'''
    s_mov_b32 {sInv}, 0x3acccccd
    v_lshl_add_u32 {tv}, {tv3}, 4, {col}
    v_lshlrev_b32 {tv}, 2, {tv}''')
    for k in (1, 2, 3):
        smask(sM, lanemask(lambda l: (l & 3) == k))
        for f in range(2): a(f'v_cndmask_b32 {G[f][0]}, {G[f][0]}, {G[f][k]}, {sM}')
    a(f'ds_bpermute_b32 {G[0][1]}, {tv}, {G[0][0]}')
    lo = a(f'ds_bpermute_b32 {G[1][1]}, {tv}, {G[1][0]}')
    for f in range(2):
        a(f'v_mul_f32 {SS[f][0]}, {sInv}, {SS[f][0]}\nv_cvt_pk_bf16_f32 {SS[f][2]}, -{SS[f][0]}, -{SS[f][0]}')
    for h in range(2):
        smask(sM, lanemask(lambda l: (l >> 4) <= 2 - h))
        for f in range(2): a(f'v_cndmask_b32 {NM[f][2*h]}, 0, {SS[f][2]}, {sM}\nv_cndmask_b32 {NM[f][2*h+1]}, 0, {SS[f][2]}, {sM}')
    smask(sM, lanemask(lambda l: (l >> 4) & 1))
    GR = V.alloc(4)
    a(f'''
    v_cndmask_b32 {mean}, {SS[0][0]}, {SS[1][0]}, {sM}
    v_cndmask_b32 {raw}, {SS[0][1]}, {SS[1][1]}, {sM}
    v_mul_f32 {tv}, {mean}, {mean}''')
    a.wait(lg=lo)
    a(f'''
    v_cndmask_b32 {ssq}, {G[0][1]}, {G[1][1]}, {sM}
    v_fma_f32 {ssq}, {ssq}, {sInv}, -{tv}
    v_max_f32 {ssq}, 0, {ssq}
    v_cvt_pk_bf16_f32 {ssq}, {ssq}, {ssq}
    v_lshlrev_b32 {ssq}, 16, {ssq}
    v_add_f32 {ssq}, 0x3727c5ac, {ssq}
    v_cvt_pk_bf16_f32 {ssq}, {ssq}, {ssq}
    v_lshlrev_b32 {ssq}, 16, {ssq}
    v_sqrt_f32 {ssq}, {ssq}
    s_lshl2_add_u32 {f1}, {tb}, {wv}
    v_cvt_pk_bf16_f32 {GR[1]}, {mean}, {ssq}
    v_and_b32 {ssq}, 0xffff0000, {GR[1]}
    v_lshlrev_b32 {mb}, 16, {GR[1]}
    v_rcp_f32 {CC[1]}, {ssq}
    v_fma_f32 {raw}, -{mb}, {SWacc[1]}, {raw}
    v_mul_f32 {CC[0]}, {LOG2E:#x}, {CC[1]}
    v_mul_f32 {raw}, {raw}, {CC[1]}
    v_cvt_pk_bf16_f32 {raw}, {raw}, {raw}
    v_ashrrev_i32 {tv}, 31, {raw}
    v_or_b32 {tv}, 0x80000000, {tv}
    v_xor_b32 {raw}, {raw}, {tv}
    v_and_b32 {raw}, 0xffff0000, {raw}
    s_lshl_b32 {f1}, {f1}, 5
    s_sub_u32 {t2}, 2047, {f1}
    v_and_b32 {tv2}, 31, {lane}
    v_sub_u32 {tv}, {t2}, {tv2}
    v_or_b32 {GR[0]}, {raw}, {tv}
    s_lshl_b32 {t2}, {wv}, 7
    s_add_u32 {t2}, {t2}, {L_ST}
    v_lshl_add_u32 {tv2}, {tv2}, 2, {t2}
    ds_write_b32 {tv2}, {GR[1]}''')
    wkv_dma(2)
    def allmax(dst, src, tmp, full):
        a(f'v_max_u32_dpp {dst}, {src}, {src} row_ror:8 row_mask:0xf bank_mask:0xf')
        for n in (4, 2, 1):
            a(f'BRK\nv_max_u32_dpp {dst}, {dst}, {dst} row_ror:{n} row_mask:0xf bank_mask:0xf')
        a(f'v_mov_b32 {tmp}, {dst}\nBRK\nv_permlane16_swap_b32 {dst}, {tmp}\nv_max_u32 {dst}, {dst}, {tmp}')
        if full: a(f'v_mov_b32 {tmp}, {dst}\nBRK\nv_permlane32_swap_b32 {dst}, {tmp}\nv_max_u32 {dst}, {dst}, {tmp}')
    def nonop(L): return [x for x in L if not (isinstance(x, It) and x.text.strip().startswith('s_nop'))]
    MX = V.alloc(2); MN = V.alloc(2)
    def mxinit(): a(f'v_mov_b32 {MX[1]}, 0xff800000\nv_mov_b32 {MN[1]}, 0x7f800000')
    with a.capture() as f_cand:
        mxinit()
        allmax(key, GR[0], tv, False)
        a(f'''
        v_cmp_ne_u32 vcc, {key}, {GR[0]}
        v_mov_b32 {GR[2]}, {tag[0]}
        v_mov_b32 {GR[3]}, {tag[1]}
        v_cndmask_b32 {raw}, 0, {GR[0]}, vcc
        v_cndmask_b32 {tv2}, 0, 16, vcc
        s_add_u32 {f1}, {f1}, {WS_CAND}''')
        allmax(key, raw, tv, False)
        a(f'''
        v_cmp_ge_u32 vcc, {GR[0]}, {key}
        s_cmp_eq_u32 {tb}, {hp}
        s_cselect_b32 {f1}, {f1}, {DROP}
        s_mov_b32 vcc_hi, 0
        v_cndmask_b32 {tv2}, {vdrop}, {tv2}, vcc
        buffer_store_dwordx4 {GR}, {tv2}, {rWS}, {f1} offen sc1''')
    stamp('stats')

    ACC = [V.alloc(20), V.alloc(20)]
    WB = [V.alloc(4) for t in range(10)]
    def gemm(nt, rd, csrd, acc, bar):
        LA = 9
        fr = [(lambda d, sl=sl, t=t: rd(d, sl, t), t, X[sl], sl == 0, sl) for sl in range(16) for t in range(nt)]
        for t in range(nt):
            fr += [(lambda d, sl=sl, t=t: rd(d, sl, t), t, X[sl], False, sl) for sl in range(16, 20)]
            fr += [(lambda d, t=t: csrd(d, t), t, NM, False, 20)]
        N = len(fr); ops = {}; rds = {}
        for n in range(N):
            with a.capture() as rds[n]: ops[n] = fr[n][0](WB[n % 10])
        with a.capture() as pro:
            for n in range(LA): a.put(rds[n])
            a.wait(lg=ops[1])
        segs = []; done = set()
        for n in range(N):
            with a.capture() as seg:
                m = n + LA
                for f in range(2):
                    d = acc[f].sub(4*fr[n][1], 4)
                    a(f'{M16} {d}, {WB[n % 10]}, {fr[n][2][f]}, {0 if fr[n][3] else d}')
                    if f == 0 and m < N:
                        c = fr[m][4] // 4
                        if c in bar and c not in done: done.add(c); a.wait(vm=bar[c]); a('s_barrier')
                        elif len(rds[m]) == 2: a.put(rds[m][:1])
                    if f == 1:
                        if m < N: a.put(rds[m][-1:])
                        if n == 1: a.wait(lg=ops[4])
                        if n % 5 == 4 and n + 1 < N: a.wait(lg=ops[min(n + 5, N - 1)])
            segs.append(seg)
        cat = lambda L: [x for s in L for x in s]
        nb_ = 16*nt
        return pro, segs[:nb_], [cat(segs[nb_ + 5*t: nb_ + 5*t + 5]) for t in range(nt)]
    def rd_kv(d, sl, t): return a(f'ds_read_b128 {d}, {ka[sl // 10]} offset:{(sl % 10)*5120 + t*256}')
    def cs_kv(d, t): return a(f'ds_read_b64_tr_b16 {d[0:2]}, {ck[0]} offset:{t*8}\nds_read_b64_tr_b16 {d[2:4]}, {ck[1]} offset:{t*8}')
    k1, ms1, k2, ms2, i1, i2 = [S.alloc() for _ in range(6)]
    C0 = V.alloc(4); C1 = V.alloc(4); top = V.alloc(); XS = V.alloc(8); MR = V.alloc(2)
    with a.capture() as f_d3: wkv_dma(3)
    with a.capture() as f_d4: wkv_dma(4); wop[4] = cs_dma()
    with a.capture() as f_ffn:
        a(f'''
        s_lshl2_add_u32 {t0}, {fkb}, {wv}
        s_mul_i32 {t0}, {t0}, {16*3072}
        s_lshl_b32 {t1}, {fnb}, 7
        s_add_u32 {t0}, {t0}, {t1}
        s_add_u32 {t1}, {t0}, {8*3072 - 1024}
        s_lshl_b32 {t2}, {wv}, 11
        s_add_u32 m0, {t2}, {L_FFN}
        buffer_load_dwordx4 {fo}, {rG}, {t0} offen lds
        buffer_load_dwordx4 {fo}, {rG}, {t1} offen offset:1024 lds
        s_add_u32 m0, {t2}, {L_FFN + 8192}
        buffer_load_dwordx4 {fo}, {rU}, {t0} offen lds
        buffer_load_dwordx4 {fo}, {rU}, {t1} offen offset:1024 lds
        s_add_u32 m0, {t2}, {L_FFN + 16384}
        s_lshl2_add_u32 {t0}, {fnb}, {wv}
        s_mul_i32 {t0}, {t0}, {16*1280}
        s_lshl_b32 {t1}, {fkb}, 7
        s_add_u32 {t0}, {t0}, {t1}
        s_add_u32 {t1}, {t0}, {8*1280 - 1024}
        buffer_load_dwordx4 {fo2}, {rD}, {t0} offen lds
        buffer_load_dwordx4 {fo2}, {rD}, {t1} offen offset:1024 lds''')
    with a.capture() as f_cld:
        a(f'''
        v_lshlrev_b32 {top}, 5, {lane}
        s_mov_b32 {f1}, {WS_CAND}
        buffer_load_dwordx4 {C0}, {top}, {rWS}, {f1} offen sc1''')
        op_c = a(f'buffer_load_dwordx4 {C1}, {top}, {rWS}, {f1} offen offset:16 sc1')
    with a.capture() as f_wq: wq_dma(0); wq_dma(1); op_wq = wq_dma(2)
    with a.capture() as f_top:
        L = a.label('cspin'); E = a.label('cok')
        a.wait(vm=op_c)
        a(f'''
        v_cmp_ne_u64 vcc, {tag}, {C0[2:4]}
        v_cmp_ne_u64 {sM}, {tag}, {C1[2:4]}''')
        a('BRK')
        with a.group(): a(f's_or_b64 vcc, vcc, {sM}\ns_cbranch_scc1 {L}\n{E}:')
        with a.outofline():
            L2 = a.label('cloop')
            a(f'''
            {L}:
            s_mov_b32 {t3}, 0
            {L2}:
            buffer_load_dwordx4 {C0}, {top}, {rWS}, {f1} offen sc1
            buffer_load_dwordx4 {C1}, {top}, {rWS}, {f1} offen offset:16 sc1
            s_add_u32 {t3}, {t3}, 1
            s_waitcnt vmcnt(0)
            v_cmp_ne_u64 vcc, {tag}, {C0[2:4]}
            v_cmp_ne_u64 {sM}, {tag}, {C1[2:4]}
            s_or_b64 vcc, vcc, {sM}
            s_cbranch_scc0 {E}
            s_cmp_lt_u32 {t3}, {SPIN}
            s_cbranch_scc1 {L2}
            s_branch {E}''')
        DP = 'row_mask:0xf bank_mask:0xf'
        a1, a2 = C0[0], C1[0]
        for n in (8, 4, 2, 1):
            a(f'''
            v_min_u32_dpp {tv}, {a1}, {a1} row_ror:{n} {DP}
            v_max_u32_dpp {C0[2]}, {a1}, {a1} row_ror:{n} {DP}
            v_max_u32_dpp {tv2}, {a2}, {a2} row_ror:{n} {DP}
            v_max_u32 {C0[3]}, {tv}, {tv2}''')
            a1, a2 = C0[2], C0[3]
        a(f'v_readlane_b32 {k1}, {a1}, 0\nv_readlane_b32 {k2}, {a2}, 0')
        for r_ in (16, 32, 48):
            a(f'''
            v_readlane_b32 {ms1}, {a1}, {r_}
            v_readlane_b32 {ms2}, {a2}, {r_}
            BRK
            s_min_u32 {f0}, {k1}, {ms1}
            s_max_u32 {k1}, {k1}, {ms1}
            s_max_u32 {k2}, {k2}, {ms2}
            s_max_u32 {k2}, {k2}, {f0}''')
        a(f'''
        s_andn2_b32 {i1}, 2047, {k1}
        s_andn2_b32 {i2}, 2047, {k2}
        s_lshr_b32 {f0}, {i1}, 5
        s_lshr_b32 {f1}, {i2}, 5
        v_readlane_b32 {ms1}, {C0[1]}, {f0}
        v_readlane_b32 {ms2}, {C0[1]}, {f1}
        v_readlane_b32 {sM[0]}, {C1[1]}, {f1}
        v_lshlrev_b32 {top}, 4, {grp}
        v_lshl_add_u32 {top}, {tv3}, 6, {top}
        v_cmp_gt_u32 vcc, 8, {col}
        s_cmp_eq_u32 {f0}, {f1}
        s_cselect_b32 {ms2}, {sM[0]}, {ms2}
        s_mul_i32 {f0}, {i1}, 1280
        s_mul_i32 {f1}, {i2}, 1280
        v_cndmask_b32 {top}, {vdrop}, {top}, vcc
        s_mov_b32 vcc_lo, 0xaaaaaaaa
        s_mov_b32 vcc_hi, 0xaaaaaaaa
        v_add_u32 {tv}, {f0}, {top}
        v_add_u32 {tv2}, {f1}, {top}
        s_lshl_b32 {f0}, {fkb}, 7
        v_cndmask_b32 {top}, {tv}, {tv2}, vcc
        buffer_load_dwordx4 {XS[0:4]}, {top}, {rX}, {f0} offen
        v_mov_b32 {tv}, {ms1}
        v_mov_b32 {tv2}, {ms2}
        v_cndmask_b32 {MR[1]}, {tv}, {tv2}, vcc''')
    pro, segs, tails = gemm(5, rd_kv, cs_kv, ACC, {1: wop[1], 2: wop[2], 3: wop[3], 4: wop[4]})
    a.wait(vm=wop[0]); a('s_barrier')
    stamp('w0')
    a.put(pro)
    cat = lambda L: [x for s in L for x in s]
    a.put(weave(cat(segs[0:20]), f_d3, f_cand)); assert not f_d3
    a.put(weave(cat(segs[20:40]), f_d4, f_cand)); assert not f_d4 and not f_cand
    c_at = P['cand_at'] // 2; t_at = P['top_at'] // 2
    mem = f_wq
    a.put(weave(cat(segs[40:c_at]), mem))
    while kind(mem[0])[0] != 'D': a.put([mem.pop(0)])
    mem = f_cld + mem + f_ffn
    a.put(weave(cat(segs[c_at:t_at]), mem))
    a.put(weave(cat(segs[t_at:]) + tails[0], mem, f_top))
    rest = f_top
    if P['verbose']: print('kv leftover', len(mem), len(rest))
    free(mean, ssq, raw, mb, key, G, SS, SWacc, GR, ON)
    ROW = V.alloc(32)
    def trw(n): return a(f'v_xor_b32 {tv}, {n*16}, {ta}\nds_write_b128 {tv}, {ROW.sub(4*n, 4)}')
    def post(acc, t, lo4, hi4, first, isk):
        for k in range(4): a(f'v_permlane16_swap_b32 {acc[0][4*t+k]}, {acc[1][4*t+k]}')
        vals = [acc[0][4*t+k] for k in range(4)] + ([acc[1][4*t+k] for k in range(4)] if hi4 else [])
        for k in range(0, len(vals), 2):
            a(f'v_max3_f32 {MX[1]}, {MX[1]}, {vals[k]}, {vals[k+1]}\nv_min3_f32 {MN[1]}, {MN[1]}, {vals[k]}, {vals[k+1]}')
        if isk:
            for k in range(4): a(f'v_mul_f32 {acc[1][4*t+k]}, {acc[1][4*t+k]}, {CC[1]}')
            for k in range(2): a(f'v_cvt_pk_bf16_f32 {ROW[20+2*t+k]}, {acc[1][4*t+2*k]}, {acc[1][4*t+2*k+1]}')
    for t in range(1, 5):
        with a.capture() as f_p: post(ACC, t-1, True, False, t == 1, True)
        a.put(weave(tails[t], mem, rest, f_p, start=[0, 0, 3])); rest += f_p
    if P['verbose']: print('kv tail leftover', len(mem), len(rest))
    a.put(mem); a.put(rest)
    a(f'v_mov_b32 {ROW[30]}, 0x3f80\nv_mov_b32 {ROW[31]}, 0')
    trw(5)
    stamp('kv_mfma')
    post(ACC, 4, True, False, False, True)
    trw(6)
    free(ka, ck, wsl, wb, fo, fo2, rG, rU, rD)

    def softmax(Pp, dst, norm1, hook):
        E2 = V.alloc(20); S1 = V.alloc(2); S2 = V.alloc(2)
        a(f'v_mul_f32 {MX[1]}, {MX[1]}, {CC[0]}\nv_mul_f32 {MN[1]}, {MN[1]}, {CC[0]}')
        for k in range(10):
            a(f'v_pk_fma_f32 {E2.sub(2*k, 2)}, {Pp[k]}, {CC}, {MX} op_sel:[0,0,1] op_sel_hi:[1,0,1] neg_lo:[0,0,1] neg_hi:[0,0,1]')
        def expsum(R_, S_):
            for k in range(10):
                a(f'v_exp_f32 {R_[k][0]}, {R_[k][0]}\nv_exp_f32 {R_[k][1]}, {R_[k][1]}')
                if k == 2: a(f'v_pk_add_f32 {S_}, {R_[0]}, {R_[1]}')
                if k > 2: a(f'v_pk_add_f32 {S_}, {S_}, {R_[k-1]}')
        E1 = [E2.sub(2*k, 2) for k in range(10)]
        expsum(E1, S1)
        hook('a')
        for k in range(10):
            a(f'v_pk_fma_f32 {Pp[k]}, {Pp[k]}, {CC}, {MN} op_sel:[0,0,1] op_sel_hi:[1,0,1] neg_lo:[1,0,0] neg_hi:[1,0,0]')
            if k == 0: a(f'v_pk_add_f32 {S1}, {S1}, {E1[9]}')
            if k == 1: a(f'v_add_f32 {S1[0]}, {S1[0]}, {S1[1]}')
            if k == 2 and norm1: a(f'v_rcp_f32 {S1[1]}, {S1[0]}')
        for k in range(10):
            if norm1: a(f'v_pk_mul_f32 {E1[k]}, {E1[k]}, {S1} op_sel:[0,1] op_sel_hi:[1,1]')
            a(f'v_cvt_pk_bf16_f32 {dst(k)}, {E1[k][0]}, {E1[k][1]}')
            hook(k)
        expsum(Pp, S2)
        a(f'''
        s_nop 0
        v_pk_add_f32 {S2}, {S2}, {Pp[9]}
        v_add_f32 {S2[0]}, {S2[0]}, {S2[1]}
        v_rcp_f32 {S2[0]}, {S2[0]}''')
        if not norm1: a(f'v_mul_f32 {MX[0]}, 0x358637bd, {S1[0]}\nv_mul_f32 {S2[0]}, {S2[0]}, {S1[0]}')
        for k in range(10):
            a(f'v_pk_mul_f32 {Pp[k]}, {Pp[k]}, {S2} op_sel_hi:[1,0]\nv_cvt_pk_bf16_f32 {dst(10+k)}, {Pp[k][0]}, {Pp[k][1]}')
            hook(10 + k)
        free(E2, S1, S2)
    def khook(n):
        if n == 'a': trw(7)
        elif n % 4 == 3: trw(n // 4)
    softmax([ACC[0].sub(2*k, 2) for k in range(10)], lambda n: ROW[n], True, khook)
    a.wait(vm=0, lg=0); a('s_barrier')
    stamp('phik')
    free(ROW, ta)
    TF = [[V.alloc(4) for ct in range(4)] for ks in range(4)]
    KD = [V.alloc(4) for _ in range(3)]
    tro = {}; trr = {}
    for ks in range(4):
        with a.capture() as trr[ks]:
            for ct in (3, 0, 1, 2):
                for j in range(2):
                    tro[(ks, ct)] = a(f'ds_read_b64_tr_b16 {TF[ks][ct][2*j:2*j+2]}, {tra[ct]} offset:{4096*ks + 2048*j}')
    a.put(trr[0] + trr[1])
    pend = trr[2] + trr[3]
    for ks in range(4):
        for t in range(3):
            a.wait(lg=tro[(ks, t)])
            a(f'{M16} {KD[t]}, {TF[ks][t]}, {TF[ks][3]}, {KD[t] if ks else 0}')
            a.put(pend[:3]); pend = pend[3:]
    FG = [[A.alloc(4) for u in range(2)] for m in range(2)]; FD = [A.alloc(4) for u in range(2)]
    def rd_q(d, sl, t): return a(f'ds_read_b128 {d}, {qa[t // 2]} offset:{sl*2560 + t*256}')
    def cs_q(d, t):
        b = 2*(t // 2)
        return a(f'ds_read_b64_tr_b16 {d[0:2]}, {cq[b]} offset:{160 + t*8}\nds_read_b64_tr_b16 {d[2:4]}, {cq[b+1]} offset:{160 + t*8}')
    QA = [ACC[0].sub(0, 12), ACC[1].sub(0, 12)]
    pro, segs, tails = gemm(3, rd_q, cs_q, QA, {})
    with a.capture() as f_fr:
        for u in range(2):
            for j in range(2):
                for m in range(2):
                    a(f'ds_read_b64_tr_b16 {FG[m][u][2*j:2*j+2]}, {fga} offset:{L_FFN + m*8192 + (32*u + 4*j)*128}')
                lo_f = a(f'ds_read_b64_tr_b16 {FD[u][2*j:2*j+2]}, {fda} offset:{L_FFN + 16384 + (32*u + 16*j)*128}')
    a.put(pro[:4])
    P1 = V.alloc(4); P2 = V.alloc(4)
    smask(sM, 0xffff)
    a(f'''
    v_cndmask_b32 {tv}, {vdrop}, {kvp_off}, {sM}
    v_cvt_pk_bf16_f32 {P1[0]}, {KD[0][0]}, {KD[0][1]}
    v_cvt_pk_bf16_f32 {P1[1]}, {KD[0][2]}, {KD[0][3]}
    v_cvt_pk_bf16_f32 {P1[2]}, {KD[1][0]}, {KD[1][1]}
    v_cvt_pk_bf16_f32 {P1[3]}, {KD[1][2]}, {KD[1][3]}
    v_cvt_pk_bf16_f32 {P2[0]}, {KD[2][0]}, {KD[2][1]}
    v_cvt_pk_bf16_f32 {P2[1]}, {KD[2][2]}, {KD[2][3]}
    buffer_store_dwordx4 {P1}, {kvp_off}, {rWS}, {s_kvp} offen sc1
    v_permlane16_swap_b32 {P2[0]}, {P2[2]}
    v_permlane16_swap_b32 {P2[1]}, {P2[3]}
    buffer_store_dwordx4 {P2}, {tv}, {rWS}, {s_kvp1} offen sc1''')
    free(TF, KD, tra, kvp_off, s_kvp, s_kvp1)
    stamp('kvp_st')
    a.put(pro[4:])

    def wo_dma(i):
        a(f's_add_u32 {t0}, {wob}, {i*128*1280}\ns_add_u32 m0, {w5}, {L_WO + i*20480}')
        for p in range(4): a(f'buffer_load_dwordx4 {wo[p]}, {rWO}, {t0} offen offset:{p*1024} lds')
        a(f's_add_u32 m0, {w5}, {L_WO + i*20480 + 4096}')
        return a(f'buffer_load_dwordx4 {wo[4]}, {rWO}, {t0} offen lds')
    wo_order = [3, 4, 0, 1, 2]
    UP = V.alloc(2)
    with a.capture() as f_w1:
        for i in wo_order[:2]: wo_dma(i)
        a.wait(lg=lo_f); a('s_barrier')
        for i in wo_order[2:P['wo1']]: wo_dma(i)
    with a.capture() as f_a:
        mxinit()
        a(f'''
        v_and_b32 {tv2}, 0xffff0000, {MR[1]}
        v_rcp_f32 {MR[0]}, {tv2}
        v_lshlrev_b32 {tv}, 16, {MR[1]}
        v_mul_f32 {MR[1]}, {tv}, {MR[0]}''')
        for k in range(4):
            a(f'''
            v_lshlrev_b32 {UP[0]}, 16, {XS[k]}
            v_and_b32 {UP[1]}, 0xffff0000, {XS[k]}
            v_fma_f32 {UP[0]}, {UP[0]}, {MR[0]}, -{MR[1]}
            v_fma_f32 {UP[1]}, {UP[1]}, {MR[0]}, -{MR[1]}
            v_cvt_pk_bf16_f32 {XS[k]}, {UP[0]}, {UP[1]}''')
        for k in range(4): a(f'v_mov_b32_dpp {XS[4+k]}, {XS[k]} row_shl:4 row_mask:0xf bank_mask:0xf bound_ctrl:1')
        a.wait(lg=lo_f)
        for u in range(2):
            a(f'{M16} {C0}, {FG[0][u]}, {XS.sub(4*u, 4)}, {C0 if u else 0}')
            a(f'{M16} {C1}, {FG[1][u]}, {XS.sub(4*u, 4)}, {C1 if u else 0}')
        a('s_mov_b32 vcc_lo, 0xcccccccc\nBRK\ns_mov_b32 vcc_hi, 0xcccccccc\nBRK\ns_nop 0\nBRK')
        for k in range(4): a(f'v_cndmask_b32 {C0[k]}, {C0[k]}, {C1[k]}, vcc')
        a(f'buffer_store_dwordx4 {C0}, {gp_off}, {rWS}, {s_gp} offen sc1')
    GA = A.alloc(68); gop = []
    def gather(counted=True):
        a(f's_and_b32 {f0}, {tb}, 3\ns_lshl_b32 {f0}, {f0}, 14')
        for p in range(16):
            op = a(f'buffer_load_dwordx4 {GA.sub(4*p, 4)}, {ga_off}, {rWS}, {f0} offen sc1')
            if counted: gop.append(op)
            if p < 15: a(f's_add_u32 {f0}, {f0}, 4096')
            if p % 4 == 3 and p < 15: a(f's_and_b32 {f0}, {f0}, 0xffff')
    with a.capture() as f_g: gather()
    g_at = P['gather_at'] // 2
    mem = f_fr + f_w1
    a.put(weave(cat(segs[:g_at]), mem, f_a))
    if P['verbose']: print('q leftover before gather', len(mem), len(f_a))
    mem += f_g
    a.put(weave(cat(segs[g_at:]) + tails[0], mem, f_a))
    rest = f_a
    if P['verbose']: print('q leftover', len(mem), len(rest))
    for t in range(1, 3):
        with a.capture() as f_p: post(QA, t-1, True, True, t == 1, False)
        a.put(weave(tails[t], mem, rest, f_p, start=[0, 0, 3])); rest += f_p
    if P['verbose']: print('q tail leftover', len(mem), len(rest))
    a.put(mem); a.put(rest)
    stamp('q_mfma')
    post(QA, 2, True, False, False, False)
    free(WB, qa, cq, NM, X, C0, C1, top, XS, MR, UP, FG, ms1, ms2, fga, fda, gp_off, s_gp, P1, P2)
    PQ = V.alloc(20)
    def pq_dst(n):
        if n >= 16: return PQ[n]
        return PQ[4*((n & 7) >> 1) + 2*(n >> 3) + (n & 1)]
    softmax([QA[0].sub(2*k, 2) for k in range(6)] + [QA[1].sub(2*k, 2) for k in range(4)], pq_dst, False, lambda n: None)
    free(ACC, CC, MN)
    stamp('phiq')

    SL = V.alloc(4); SH = V.alloc(4); KS = V.alloc(4)
    def summate(waits):
        if waits: a.wait(vm=gop[0])
        a(f'v_accvgpr_mov_b32 {GA[64]}, {GA[0]}\nv_accvgpr_mov_b32 {GA[65]}, {GA[1]}')
        for p in range(16):
            if waits and p < 15: a.wait(vm=gop[p+1])
            d = SH if p % 2 == 0 else SL
            a(f'{M16} {d}, {SEL}, {GA.sub(4*p + 2, 4)}, {d if p > 1 else 0}')
    with a.capture() as main: summate(True)
    with a.capture() as f_w:
        for i in wo_order[P['wo1']:]: op_wo = wo_dma(i)
    a.put(main)
    L = a.label('gredo'); E = a.label('gok')
    a(f'v_cmp_u_f32 vcc, {SH[0]}, {SL[0]}\ns_cbranch_vccnz {L}\n{E}:')
    with a.outofline():
        L2 = a.label('gloop')
        a(f'{L}:\ns_mov_b32 {t3}, 0\n{L2}:')
        gather(False)
        a(f's_add_u32 {t3}, {t3}, 1\ns_waitcnt vmcnt(0)')
        summate(False)
        a(f'''
        s_nop 7
        v_cmp_u_f32 vcc, {SH[0]}, {SL[0]}
        s_cbranch_vccz {E}
        s_cmp_lt_u32 {t3}, {SPIN}
        s_cbranch_scc1 {L2}
        s_branch {E}''')
    a(f'''
    v_cvt_pk_bf16_f32 {KS[0]}, {SL[0]}, {SL[1]}
    v_cvt_pk_bf16_f32 {KS[1]}, {SL[2]}, {SL[3]}
    v_cvt_pk_bf16_f32 {KS[2]}, {SH[0]}, {SH[1]}
    v_cvt_pk_bf16_f32 {KS[3]}, {SH[2]}, {SH[3]}
    ds_write_b128 {ksa}, {KS}''')
    a.wait(lg=0); a('s_barrier')
    stamp('kvsum')
    NA = [V.alloc(4) for _ in range(10)]; nop_ = []
    for t in (1, 0):
        for s in range(5): nop_.append(a(f'ds_read_b128 {NA[5*t + s]}, {na[t]} offset:{16*s}'))
    N0 = V.alloc(16); N1 = V.alloc(16)
    RD = V.alloc(2); O0, O1, O2 = V.alloc(4), V.alloc(4), V.alloc(4)
    with a.capture() as main:
        for s in range(5):
            if s in (0, 2): a.wait(lg=nop_[2*s + 1 if s == 0 else 9])
            a(f'{M32} {N1}, {NA[5+s]}, {PQ.sub(4*s, 4)}, {N1 if s else 0}')
        for s in range(5): a(f'{M32} {N0}, {NA[s]}, {PQ.sub(4*s, 4)}, {N0 if s else 0}')
    with a.capture() as f_r:
        smask(sM, 0xffffffff)
        a(f's_mov_b32 m0, {epl}\nv_cndmask_b32 {wo[2]}, {vdrop}, {wo[2]}, {sM}')
        for p in range(3): op_res = a(f'buffer_load_dwordx4 {wo[p]}, {rX}, {ob} offen offset:{p*1024} lds')
    mem = f_w + f_r
    a.put(weave(main, mem)); a.put(mem)
    a(f'v_add_f32 {RD[0]}, {MX[0]}, {N1[4]}\nv_rcp_f32 {RD[0]}, {RD[0]}\ns_nop 0')
    for k in range(4): a(f'v_mul_f32 {N1[k]}, {N1[k]}, {RD[0]}')
    for k in range(2): a(f'v_cvt_pk_bf16_f32 {O2[k]}, {N1[2*k]}, {N1[2*k+1]}')
    for k in (0, 1, 4, 5, 2, 3, 6, 7):
        pr = N0.sub(2*k, 2)
        dst = (O0, O1)[(k >> 1) & 1][2*(k >> 2) + (k & 1)]
        a(f'v_pk_mul_f32 {pr}, {pr}, {RD} op_sel_hi:[1,0]\nv_cvt_pk_bf16_f32 {dst}, {pr[0]}, {pr[1]}')
        if k == 5: a(f'buffer_store_dwordx4 {O0}, {o_off}, {rWS}, {s_o0} offen sc1')
    a(f'''
    buffer_store_dwordx4 {O1}, {o_off}, {rWS}, {s_o0} offen offset:256 sc1
    v_permlane32_swap_b32 {O2[0]}, {O2[2]}
    v_permlane32_swap_b32 {O2[1]}, {O2[3]}
    buffer_store_dwordx4 {O2}, {o_off2}, {rWS}, {s_o1} offen sc1''')
    free(GA, SEL, ksa, na, SL, SH, KS, NA, N0, N1, RD, PQ, MX, ga_off, o_off, o_off2, s_o0, s_o1, wob, w5)
    stamp('o_st')

    GB = [V.alloc(4) for _ in range(10)]
    def gp_gather():
        for p in range(10):
            if p % 4 == 0 and p: a(f's_mov_b32 {f0}, {p*1024}')
            op = a(f'buffer_load_dwordx4 {GB[p]}, {gp_ld}, {rWS}, {f0 if p >= 4 else 0} offen offset:{(p % 4)*1024} sc1')
        return op
    def gp_sum():
        for p in range(1, 10):
            a(f'v_pk_add_f32 {GB[0][0:2]}, {GB[0][0:2]}, {GB[p][0:2]}\nv_pk_add_f32 {GB[0][2:4]}, {GB[0][2:4]}, {GB[p][2:4]}')
        a(f'v_pk_add_f32 {GB[1][0:2]}, {GB[0][0:2]}, {GB[0][2:4]}\nv_cmp_u_f32 vcc, {GB[1][0]}, {GB[1][1]}')
    op_gp = gp_gather()
    free(O0, O1, O2)
    a.wait(vm=op_res); a('s_barrier')
    stamp('wo_in')
    OA = V.alloc(20); XR = V.alloc(10); MR = V.alloc(2)
    a(f'''
    s_and_b32 {t0}, {otf}, 7
    s_lshl_b32 {t0}, {t0}, 6
    s_add_u32 {t0}, {t0}, {L_ST}
    v_lshl_add_u32 {tv}, {col}, 2, {t0}
    ds_read_b32 {tv4}, {tv}''')
    for t in range(5): lo_x = a(f'ds_read_b64 {XR.sub(2*t, 2)}, {ea} offset:{8*t}')
    order = [16, 17, 18, 19] + list(range(16))
    NPRE = P['npre']
    WFr = [[A.alloc(4) for t in range(5)] for _ in range(12)]
    WF = {s: WFr[n % 12] for n, s in enumerate(order)}
    wro = {}
    def wo_reads(s):
        for t in range(5):
            for j in range(2):
                if s < 16: ad, off = pa[s // 8], (s % 8)*6400 + j*1280 + 8*t
                else: ad, off = pa[2 + (s - 16) // 2], ((s - 16) % 2)*25600 + j*3200 + 8*t
                wro[s] = a(f'ds_read_b64_tr_b16 {WF[s][t][2*j:2*j+2]}, {ad} offset:{L_WO + off}')
    def residual():
        for k in range(10):
            pr = OA.sub(2*k, 2)
            a(f'''
            v_lshlrev_b32 {pr[0]}, 16, {XR[k]}
            v_and_b32 {pr[1]}, 0xffff0000, {XR[k]}
            v_pk_fma_f32 {pr}, {pr}, {MR}, {MR} op_sel:[0,0,1] op_sel_hi:[1,0,1] neg_lo:[0,0,1] neg_hi:[0,0,1]''')
    wo_reads(order[0])
    a.wait(lg=lo_x)
    a(f'''
    v_and_b32 {tv2}, 0xffff0000, {tv4}
    v_rcp_f32 {MR[0]}, {tv2}
    v_lshlrev_b32 {tv}, 16, {tv4}
    v_mul_f32 {MR[1]}, {tv}, {MR[0]}
    v_add_f32 {MR[0]}, 1.0, {MR[0]}''')
    residual()
    for n in range(1, 3): wo_reads(order[n])
    a.wait(vm=op_gp)
    gp_sum()
    L = a.label('predo'); E = a.label('pok')
    a(f's_cbranch_vccnz {L}\n{E}:')
    with a.outofline():
        L2 = a.label('ploop')
        a(f'{L}:\ns_mov_b32 {t3}, 0\n{L2}:')
        gp_gather()
        a(f's_add_u32 {t3}, {t3}, 1\ns_waitcnt vmcnt(0)')
        gp_sum()
        a(f'''
        s_cbranch_vccz {E}
        s_cmp_lt_u32 {t3}, {SPIN}
        s_cbranch_scc1 {L2}
        s_branch {E}''')
    OF = {s: V.alloc(4) for s in range(20)}
    s_ol = S.alloc(); oop = {}
    def o_load(s, counted=True):
        if s % 4 == 0: a(f's_add_u32 {f0}, {s_ol}, {s*1024}')
        op = a(f'buffer_load_dwordx4 {OF[s]}, {l16}, {rWS}, {f0} offen offset:{(s % 4)*1024} sc1')
        if counted: oop[s] = op
    a(f's_mul_i32 {s_ol}, {otf}, 20480\ns_add_u32 {s_ol}, {s_ol}, {WS_O}')
    stamp('gp_in')
    for s in order[:12]: o_load(s)
    for k in range(4): a(f'v_mul_f32 {GB[1][k]}, 0xbfb8aa3b, {GB[0][k]}')
    for k in range(4): a(f'v_exp_f32 {GB[1][k]}, {GB[1][k]}')
    for k in range(4): a(f'v_mul_f32_dpp {GB[2][k]}, {GB[0][k]}, {GB[0][k]} quad_perm:[2,3,0,1] row_mask:0xf bank_mask:0xf')
    for k in range(4): a(f'v_add_f32 {GB[1][k]}, 1.0, {GB[1][k]}')
    for k in range(4): a(f'v_rcp_f32 {GB[1][k]}, {GB[1][k]}')
    for k in range(4): a(f'v_mul_f32 {GB[1][k]}, {GB[1][k]}, {GB[2][k]}')
    H = V.alloc(8)
    a(f'v_cvt_pk_bf16_f32 {H[0]}, {GB[1][0]}, {GB[1][1]}\nv_cvt_pk_bf16_f32 {H[1]}, {GB[1][2]}, {GB[1][3]}')
    for sub in (1, 2, 3):
        for e in range(2):
            a(f'v_mov_b32_dpp {H[2*sub+e]}, {H[e]} row_shl:{4*sub} row_mask:0xf bank_mask:0xf bound_ctrl:1')
    for u in range(2): a(f'{M16} {GB[3]}, {H.sub(4*u, 4)}, {FD[u]}, {GB[3] if u else 0}')
    wo_reads(order[3])
    a(f'buffer_store_dword {GB[3][0]}, {yp_off}, {rWS}, {s_yp0} offen sc1')
    a(f'buffer_store_dword {GB[3][1]}, {yp_off}, {rWS}, {s_yp1} offen sc1')
    for n in range(4, NPRE):
        wo_reads(order[n])
        if n == P['oload_after']:
            for s in order[12:]: o_load(s)
    stamp('wo_rd')
    def tailcheck():
        a(f'v_max3_u32 {tv}, {OF[16][0]}, {OF[17][0]}, {OF[18][0]}\nv_max_u32 {tv}, {tv}, {OF[19][0]}\nv_cmp_eq_u32 vcc, -1, {tv}')
    a.wait(vm=oop[19])
    tailcheck()
    L = a.label('tspin'); E = a.label('tok')
    a(f's_cbranch_vccnz {L}\n{E}:')
    with a.outofline():
        L2 = a.label('tloop'); L3 = a.label('tdone')
        a(f'{L}:\ns_mov_b32 {t3}, 0\n{L2}:')
        for s in order[:4]: o_load(s, False)
        a(f's_add_u32 {t3}, {t3}, 1\ns_waitcnt vmcnt(0)')
        tailcheck()
        a(f's_cbranch_vccz {L3}\ns_cmp_lt_u32 {t3}, {SPIN}\ns_cbranch_scc1 {L2}\n{L3}:')
        for s in order[4:]: o_load(s, False)
        a(f's_waitcnt vmcnt(8)\ns_branch {E}')
    stamp('hop2')
    YL = [V.alloc(4) for _ in range(16)] if False else None
    with a.capture() as f_rd:
        for n in range(NPRE, 20): wo_reads(order[n])
    def p3(n, waits=True):
        s = order[n]
        if waits: a.wait(vm=oop[s] if n >= 4 else None, lg=wro[s])
        for t in range(5):
            d = OA.sub(4*t, 4)
            a(f'{M16} {d}, {WF[s][t]}, {OF[s]}, {d}')
    rd_i = 0
    for n in range(20):
        with a.capture() as main: p3(n)
        lim = 10 * max(0, min(20, n + 12) - NPRE)
        need_ = 10 * max(0, n + 2 - NPRE)
        rest = f_rd[rd_i:lim]
        a.put(weave(main, rest))
        rd_i = lim - len(rest)
        if rd_i < min(need_, len(f_rd)): a.put(f_rd[rd_i:need_]); rd_i = need_
    stamp('p3')
    L = a.label('oredo'); E = a.label('ook')
    a(f'''
    s_or_b32 {t0}, s2, {wv}
    s_cselect_b32 {t0}, {DROP}, 0
    v_cmp_eq_u32 vcc, 0, {lane}
    s_lshr_b32 {t1}, {i1}, 4
    s_lshr_b32 {t2}, {i2}, 4
    v_cndmask_b32 {tv}, {vdrop}, {lane}, vcc
    v_cmp_u_f32 vcc, {OA[16]}, {OA[16]}
    s_cbranch_vccnz {L}
    {E}:
    buffer_store_dwordx2 {vtag}, {tv}, {rWS}, {t0} offen sc1''')
    with a.outofline():
        L2 = a.label('oloop')
        a(f'{L}:\ns_mov_b32 {t3}, 0\n{L2}:')
        for s in order: o_load(s, False)
        residual()
        a(f's_add_u32 {t3}, {t3}, 1\ns_waitcnt vmcnt(0)')
        for n in range(20):
            wo_reads(order[n]); a('s_waitcnt lgkmcnt(0)'); p3(n, False)
        a(f'''
        s_nop 7
        v_cmp_u_f32 vcc, {OA[16]}, {OA[16]}
        s_cbranch_vccz {E}
        s_cmp_lt_u32 {t3}, {SPIN // 8}
        s_cbranch_scc1 {L2}
        s_branch {E}''')
    for sel, (kk, tt, tf_) in enumerate(((k1, i1, t1), (k2, i2, t2))):
        L = a.label('sel'); E = a.label('seldone')
        a(f'''
        s_cmp_eq_u32 {tf_}, {otf}
        s_cbranch_scc1 {L}
        {E}:''')
        with a.outofline():
            L2 = a.label('yloop'); L3 = a.label('yok')
            a(f'''
            {L}:
            v_min_u32 {tv3}, 59, {lane}
            v_mul_u32_u24 {tv}, 3277, {tv3}
            v_lshrrev_b32 {tv}, 16, {tv}
            v_mul_u32_u24 {tv2}, {20480 - 320}, {tv}
            v_lshl_add_u32 {tv2}, {tv3}, 4, {tv2}
            s_mov_b32 {t3}, 0
            {L2}:
            s_and_b32 {f0}, {hp}, 7
            s_mul_i32 {f0}, {f0}, 320
            s_add_u32 {f0}, {f0}, {WS_YP + sel*61440}''')
            for p in range(8):
                a(f'buffer_load_dwordx4 {OF[p]}, {tv2}, {rWS}, {f0} offen sc1\ns_add_u32 {f0}, {f0}, 2560')
            a(f'''
            s_not_b32 {t0}, {kk}
            s_and_b32 {f1}, {kk}, 0x7fffffff
            s_cmp_lt_i32 {kk}, 0
            s_cselect_b32 {t0}, {f1}, {t0}
            s_and_b32 {t0}, {t0}, 0xffff0000
            v_mov_b32 {tv}, 0xbfb8aa3b
            v_mul_f32 {tv}, {t0}, {tv}
            v_exp_f32 {tv}, {tv}
            s_add_u32 {t3}, {t3}, 1
            v_add_f32 {tv}, 1.0, {tv}
            v_rcp_f32 {tv}, {tv}
            s_waitcnt vmcnt(0)''')
            for p in range(1, 8):
                a(f'v_pk_add_f32 {OF[0][0:2]}, {OF[0][0:2]}, {OF[p][0:2]}\nv_pk_add_f32 {OF[0][2:4]}, {OF[0][2:4]}, {OF[p][2:4]}')
            a(f'''
            v_pk_add_f32 {OF[1][0:2]}, {OF[0][0:2]}, {OF[0][2:4]}
            v_cmp_u_f32 vcc, {OF[1][0]}, {OF[1][1]}
            s_cbranch_vccz {L3}
            s_cmp_lt_u32 {t3}, {SPIN}
            s_cbranch_scc1 {L2}
            {L3}:
            v_add_u32 {tv2}, {epl}, {l16}''')
            for k in range(4): a(f'v_mul_f32 {OF[0][k]}, {OF[0][k]}, {tv}')
            a(f'''
            ds_write_b128 {tv2}, {OF[0]}
            v_mul_u32_u24 {tv2}, 80, {grp}
            v_add_u32 {tv2}, {epl}, {tv2}
            s_and_b32 {t0}, {tt}, 15
            v_cmp_eq_u32 vcc, {t0}, {col}
            s_mov_b64 exec, vcc''')
            for ps in range(3):
                for t in range(5): a(f'ds_read_b128 {OF[1 + 5*ps + t]}, {tv2} offset:{320*ps + 16*t}')
            a('s_waitcnt lgkmcnt(0)')
            for ps in range(3):
                for t in range(5):
                    for h in range(2):
                        d = OA.sub(4*t + 2*h, 2)
                        a(f'v_pk_add_f32 {d}, {d}, {OF[1 + 5*ps + t].sub(2*h, 2)}')
            a(f's_mov_b64 exec, -1\ns_branch {E}')
    for t in range(5):
        for k in (2*t, 2*t+1): a(f'v_cvt_pk_bf16_f32 {XR[k]}, {OA[2*k]}, {OA[2*k+1]}')
        a(f'ds_write_b64 {ea}, {XR.sub(2*t, 2)} offset:{8*t}')
    a(f'v_add_u32 {tv}, {epl}, {l16}')
    ro = [a(f'ds_read_b128 {OF[p]}, {tv} offset:{1024*p}') for p in range(3)]
    for p in range(3):
        a.wait(lg=ro[p])
        a(f'buffer_store_dwordx4 {OF[p]}, {wo[p]}, {rOUT}, {ob} offen offset:{p*1024}')
    if stamps or probe == 'end':
        a('s_waitcnt vmcnt(0)')
        stamp('end')
    if stamps:
        a(f'''
        s_lshl2_add_u32 {t0}, s2, {wv}
        s_lshl_b32 {t0}, {t0}, 8
        s_add_u32 {t0}, {t0}, {WS_STAMP}
        v_lshlrev_b32 {tv}, 2, {lane}
        buffer_store_dword {vstamp}, {tv}, {rWS}, {t0} offen''')
    if probe:
        a(f'''
        s_add_u32 {sP1[0]}, {sP1[0]}, 5000
        s_mov_b32 {t3}, 0
        L_spin:
        s_memrealtime {sT64}
        s_add_u32 {t3}, {t3}, 1
        s_cmp_gt_u32 {t3}, 0x10000
        s_cbranch_scc1 L_end
        s_waitcnt lgkmcnt(0)
        s_sub_u32 {t0}, {sT64[0]}, {sP1[0]}
        s_cmp_lt_i32 {t0}, 0
        s_cbranch_scc1 L_spin''')
    a('L_end:\ns_endpgm')

    body = a.text(P['verbose'], P['align'])
    head = f'''; Fused LayerNorm + Hedgehog linear attention + routed SwiGLU, one persistent launch (generated by gen2.py)
; @launch grid=(256,1,1) block=(256,1,1) lds=163840
.amdgcn_target "amdgcn-amd-amdhsa--gfx950"
.text
.globl {KNAME}_kernel
.p2align 8
.type {KNAME}_kernel,@function
{KNAME}_kernel:
'''
    tail = f'''.section .rodata,"a"
.p2align 6
.amdhsa_kernel {KNAME}_kernel
  .amdhsa_next_free_vgpr 512
  .amdhsa_next_free_sgpr 102
  .amdhsa_accum_offset 256
  .amdhsa_group_segment_fixed_size 0
  .amdhsa_kernarg_size 96
  .amdhsa_user_sgpr_count 2
  .amdhsa_user_sgpr_kernarg_segment_ptr 1
  .amdhsa_system_sgpr_workgroup_id_x 1
  .amdhsa_float_denorm_mode_32 3
.end_amdhsa_kernel
'''
    sys.stderr.write(f'vgpr hi {V.hi} agpr hi {A.hi} sgpr hi {S.hi} padded {a.padded} promoted {a.promoted} misaligned {a.misaligned} lines {len(body.splitlines())}\n')
    return head + body + tail, stamp_names

def write(name, **kw):
    t, _ = gen(False, **kw); open(f'{name}.s', 'w').write(t)
    kw = dict(kw); kw['verbose'] = False
    t, n = gen(True, **kw); open(f'{name}_st.s', 'w').write(t); open(f'{name}_st.names', 'w').write('\n'.join(n))

if __name__ == '__main__':
    write('k2', verbose=True)
```
